```python
import torch

def _softmax(x, axis=-1):
    return torch.softmax(x, dim=axis)
def _gelu(x):
    return torch.nn.functional.gelu(x, approximate="tanh")
def _silu(x):
    return torch.nn.functional.silu(x)
def _sigmoid(x):
    return torch.sigmoid(x)
def _layernorm(x, axis=-1, eps=1e-5):
    m = x.mean(dim=axis, keepdim=True)
    v = x.var(dim=axis, keepdim=True, unbiased=False)
    return (x - m) / torch.sqrt(v + eps)
def _scatter_add(tgt, idx, src, axis=0):
    return tgt.clone().index_add_(axis, idx, src)
def _segment_sum(src, seg, n):
    out = torch.zeros((n,) + src.shape[1:], dtype=src.dtype)
    return out.index_add_(0, seg, src)
def _pad(x, pw):
    flat = tuple(v for pair in reversed(pw) for v in pair)
    return torch.nn.functional.pad(x, flat)

kernel_name = 'recurrent_scan__sliding_block_cached__glu_gated_bilinear__decode'

def setup_inputs():

    _w = (lambda a: (lambda t: t.to(torch.bfloat16) if t.is_floating_point() else t)(torch.as_tensor(a)))
    def _A_setup():
        B, Sq, D = 2, 1, 448
        Hq, Hkv, Sk, Dh = 16, 8, 32768, 256
        assert Hq % Hkv == 0, (Hq, Hkv)
        return {
            "x": _w((lambda *s: torch.randn(*s, dtype=torch.bfloat16) * 0.2)(B, Sq, D)),
            "k_cache": _w((lambda *s: torch.randn(*s, dtype=torch.bfloat16) * 1.6)(B, Hkv, Sk, Dh)),
            "v_cache": _w((lambda *s: torch.randn(*s, dtype=torch.bfloat16) * 1.6)(B, Hkv, Sk, Dh)),
            "wq": _w((lambda *s: torch.randn(*s, dtype=torch.bfloat16) * 1.6)(D, Hq * Dh) * (D ** -0.5)),
            "wo": _w((lambda *s: torch.randn(*s, dtype=torch.bfloat16) * 1.6)(Hq * Dh, D) * ((Hq * Dh) ** -0.5)),
        }
    _A_in = _A_setup()

    def _B_setup():
        B, S, D, F = 2, 1, 448, 1792
        return {
            "x": _w((lambda *s: torch.randn(*s, dtype=torch.bfloat16) * 0.2)(B, S, D)),
            "w_gate": _w((lambda *s: torch.randn(*s, dtype=torch.bfloat16) * 0.8)(D, F) * (D ** -0.5)),
            "w_up": _w((lambda *s: torch.randn(*s, dtype=torch.bfloat16) * 0.8)(D, F) * (D ** -0.5)),
            "w_down": _w((lambda *s: torch.randn(*s, dtype=torch.bfloat16) * 0.8)(F, D) * (F ** -0.5)),
        }
    _B_in = _B_setup()

    return {
        "A_x": _A_in["x"],
        "A_k_cache": _A_in["k_cache"],
        "A_v_cache": _A_in["v_cache"],
        "A_wq": _A_in["wq"],
        "A_wo": _A_in["wo"],
        "B_x": _B_in["x"],
        "B_w_gate": _B_in["w_gate"],
        "B_w_up": _B_in["w_up"],
        "B_w_down": _B_in["w_down"],
    }

def reference(A_x, A_k_cache, A_v_cache, A_wq, A_wo, B_x, B_w_gate, B_w_up, B_w_down):
    def _A_ref(x, k_cache, v_cache, wq, wo):
        B, Sq, D = x.shape
        Hq, Dh = 16, 256
        Hkv, Sk = k_cache.shape[1], k_cache.shape[2]
        W = min(4096, max(256, Sk // 4))
        rep = Hq // Hkv
        q = (lambda x, *d: x.permute(*d))((x @ wq).reshape(B, Sq, Hq, Dh), 0, 2, 1, 3)
        k = (lambda x, n, axis: torch.repeat_interleave(x, n, dim=axis))(k_cache[:, :, Sk - W:, :], rep, axis=1)
        v = (lambda x, n, axis: torch.repeat_interleave(x, n, dim=axis))(v_cache[:, :, Sk - W:, :], rep, axis=1)
        scores = torch.einsum("bhqd,bhkd->bhqk", q, k) * (Dh ** -0.5)
        p = _softmax(scores, axis=-1)
        o = torch.einsum("bhqk,bhkd->bhqd", p, v)
        return (lambda x, *d: x.permute(*d))(o, 0, 2, 1, 3).reshape(B, Sq, Hq * Dh) @ wo

    def _B_ref(x, w_gate, w_up, w_down):
        g = torch.einsum("bsd,df->bsf", x, w_gate)
        u = torch.einsum("bsd,df->bsf", x, w_up)
        h = g * u
        return torch.einsum("bsf,fd->bsd", h, w_down)

    x = A_x
    xn = _layernorm(x, axis=-1)
    s = _A_ref(xn, A_k_cache, A_v_cache, A_wq, A_wo)
    g = _silu(_B_ref(xn, B_w_gate, B_w_up, B_w_down))
    return x + s * g
```

```python
KNAME = "recurrent_scan__sliding_block_cached__glu_gated_bilinear__decode_kernel"
HEADER = """; Kernarg layout for this problem (96 bytes, ptrs only, base s[0:1]):
"""
class Asm:
    def __init__(self):
        self.lines = []
        self.nlab = 0
    def __call__(self, s):
        for l in s.strip("\n").split("\n"):
            self.lines.append("    " + l.strip() if not l.strip().endswith(":") else l.strip())
    def label(self, name):
        self.lines.append(name + ":")
    def newlabel(self, p="L"):
        self.nlab += 1
        return "%s_%d" % (p, self.nlab)
    def text(self):
        return "\n".join(self.lines) + "\n"

def wrap(body, grid, block, lds, vgpr, sgpr=102, accum=None, kname=KNAME):
    if accum is None:
        accum = (vgpr + 3) // 4 * 4
    s = HEADER
    s += "; @launch grid=(%d,%d,%d) block=(%d,%d,%d) lds=%d\n" % (grid + block + (lds,))
    s += '.amdgcn_target "amdgcn-amd-amdhsa--gfx950"\n.text\n.globl %s\n.p2align 8\n.type %s,@function\n%s:\n' % (kname, kname, kname)
    s += body
    s += """.section .rodata,"a"
.p2align 6
.amdhsa_kernel %s
  .amdhsa_next_free_vgpr %d
  .amdhsa_next_free_sgpr %d
  .amdhsa_accum_offset %d
  .amdhsa_group_segment_fixed_size 0
  .amdhsa_kernarg_size 96
  .amdhsa_user_sgpr_count 2
  .amdhsa_user_sgpr_kernarg_segment_ptr 1
  .amdhsa_system_sgpr_workgroup_id_x 1
.end_amdhsa_kernel
""" % (kname, vgpr, sgpr, accum)
    return s
```

```python
import re
TRANS = ("v_exp_f32", "v_log_f32", "v_rcp_f32", "v_rsq_f32", "v_sqrt_f32", "v_sin_f32", "v_cos_f32", "v_rcp_iflag_f32")
def regs(tok):
    tok = tok.strip()
    tok = tok.lstrip("-")
    m = re.fullmatch(r"abs\((.*)\)", tok)
    if m: tok = m.group(1)
    tok = tok.strip("|")
    m = re.fullmatch(r"([vsa])\[(\d+):(\d+)\]", tok)
    if m:
        return [(m.group(1), i) for i in range(int(m.group(2)), int(m.group(3)) + 1)]
    m = re.fullmatch(r"([vsa])(\d+)", tok)
    if m:
        return [(m.group(1), int(m.group(2)))]
    if tok in ("vcc", "vcc_lo", "vcc_hi"): return [("x", "vcc")]
    if tok in ("exec", "exec_lo", "exec_hi"): return [("x", "exec")]
    if tok == "m0": return [("x", "m0")]
    return []
class Ins:
    def __init__(self, line):
        self.line = line
        s = line.split(";")[0].strip()
        self.label = s.endswith(":")
        self.mn = ""; self.ops = []; self.mods = ""
        if self.label or not s or s.startswith("."):
            self.kind = "meta"; return
        parts = s.split(None, 1)
        self.mn = parts[0]
        rest = parts[1] if len(parts) > 1 else ""
        toks = []; cur = ""; depth = 0
        for ch in rest:
            if ch in "[(": depth += 1
            if ch in "])": depth -= 1
            if ch == "," and depth == 0:
                toks.append(cur.strip()); cur = ""
            else: cur += ch
        if cur.strip(): toks.append(cur.strip())
        if toks:
            lt = toks[-1].split()
            toks[-1] = lt[0]
            self.mods = " ".join(lt[1:])
        self.ops = toks
        mn = self.mn
        self.dpp = any(k in self.mods for k in ("row_ror", "row_shr", "row_shl", "quad_perm", "row_mirror", "row_half_mirror", "row_bcast")) or mn.endswith("_dpp")
        base = re.sub(r"_(e32|e64|dpp|sdwa)$", "", mn)
        self.base = base
        R = [regs(t) for t in toks]
        self.vw = []; self.vr = []; self.sw = []; self.sr = []; self.cread = []
        def addr(lst):
            for r in lst:
                (self.vr if r[0] in "va" else self.sr).append(r)
        def addw(lst):
            for r in lst:
                (self.vw if r[0] in "va" else self.sw).append(r)
        if base.startswith("v_mfma"):
            self.kind = "mfma"
            addw(R[0]); addr(R[1]); addr(R[2]); addr(R[3]); self.cread = [r for r in R[3] if r[0] in "va"]
            self.ab = [r for r in R[1] + R[2]]
        elif base.startswith("v_"):
            self.kind = "valu"
            if base.startswith("v_cmp"):
                addw(R[0]); [addr(x) for x in R[1:]]
                if base.startswith("v_cmpx"): addw([("x", "exec")])
            elif base in ("v_readlane_b32", "v_readfirstlane_b32"):
                addw(R[0]); [addr(x) for x in R[1:]]
            elif base.startswith("v_permlane") and base.endswith("swap_b32"):
                addw(R[0]); addw(R[1]); addr(R[0]); addr(R[1])
            else:
                addw(R[0]); [addr(x) for x in R[1:]]
                if base in ("v_fmac_f32", "v_dot2c_f32_bf16", "v_writelane_b32") : addr(R[0])
                if base in ("v_cndmask_b32",) and len(toks) == 3: addr([("x", "vcc")])
                if base in ("v_add_co_u32", "v_sub_co_u32", "v_addc_co_u32"):
                    self.vr = []; self.sr = []; addw(R[1]); [addr(x) for x in R[2:]]
                if self.dpp: addr(R[0])
        elif base.startswith("buffer_") or base.startswith("global_"):
            self.kind = "vmem"
            lds = " lds" in (" " + self.mods) or base.startswith("global_load_lds")
            if "load" in base and not lds:
                addw(R[0]); [addr(x) for x in R[1:]]
            elif "atomic" in base and "sc0" in self.mods:
                addw(R[0]); [addr(x) for x in R]
            else:
                [addr(x) for x in R]
            self.lds = lds
            self.widestore = ("store" in base and (base.endswith("x4") or base.endswith("x3")))
            if "store" in base:
                self.sdata = R[0] if base.startswith("buffer_") else R[1]
        elif base.startswith("ds_"):
            self.kind = "ds"
            if base.startswith("ds_read") or base.startswith("ds_bpermute") or base.startswith("ds_swizzle"):
                addw(R[0]); [addr(x) for x in R[1:]]
            else:
                [addr(x) for x in R]
        elif base.startswith("s_load") or base in ("s_memtime", "s_memrealtime"):
            self.kind = "smem"; addw(R[0]); [addr(x) for x in R[1:]]
        elif base == "s_nop":
            self.kind = "nop"
        elif base.startswith("s_cbranch") or base in ("s_branch", "s_endpgm", "s_barrier", "s_waitcnt", "s_sleep", "s_setprio", "s_setpc_b64"):
            self.kind = "ctl"
        elif base.startswith("s_"):
            self.kind = "salu"
            if base.startswith("s_cmp") or base.startswith("s_bitcmp"):
                [addr(x) for x in R]
            else:
                addw(R[0]); [addr(x) for x in R[1:]]
                if "saveexec" in base: addw([("x", "exec")])
        else:
            raise ValueError("unknown instr: " + line)
        self.trans = base in TRANS
        self.dot = base.startswith("v_dot")
        self.permlane = base.startswith("v_permlane")
def resolve(lines):
    out = []
    pos = 0
    vlast = {}
    slast = {}
    m0w = -100
    cread = {}
    stdata = {}
    nins = 0
    for line in lines:
        I = Ins(line)
        if I.kind == "meta":
            out.append(line); continue
        if I.kind == "nop":
            n = int(I.ops[0], 0); pos += n + 1; out.append(line); continue
        need = 0
        def req(p, n):
            nonlocal need
            need = max(need, n - (pos - p - 1))
        if I.kind in ("valu", "mfma", "vmem", "ds"):
            for r in I.vr:
                if r in vlast:
                    p, k, ex = vlast[r]
                    if k == "mfma":
                        if I.kind == "mfma" and r in I.cread and r not in I.ab:
                            if ex == tuple(I.cread) : pass
                            else: req(p, 6)
                        else: req(p, 8)
                    elif k in ("valu", "trans", "dot"):
                        if I.kind == "mfma": req(p, 2)
                        if I.kind == "valu":
                            if I.dpp: req(p, 2)
                            if I.permlane: req(p, 2)
                            if I.base in ("v_readlane_b32", "v_readfirstlane_b32"): req(p, 1)
                            if k == "trans" and not I.trans: req(p, 1)
                        if k == "trans" and I.kind in ("vmem", "ds"): req(p, 1)
                        if k == "dot":
                            if not (I.kind == "valu" and I.base == ex[0] and r in I.vw and ex[1] == I.base): req(p, 3)
                            elif r in I.vr and I.base == ex[0]:
                                srcab = [x for t in I.ops[1:3] for x in regs(t)]
                                if r in srcab: req(p, 3)
            for r in I.vw:
                if r in vlast:
                    p, k, ex = vlast[r]
                    if k == "mfma":
                        if I.kind == "mfma":
                            if not (ex == tuple(I.vw) and tuple(I.cread) == ex): req(p, 6 if r in I.cread else 8)
                        else: req(p, 8)
                    if k == "dot" and not (I.base == ex[0]): req(p, 3)
                if I.kind == "valu" and r in cread: req(cread[r], 3)
                if r in stdata: req(stdata[r], 2 if I.kind == "valu" else 1)
            for r in I.sr:
                if r in slast:
                    if I.kind == "vmem": req(slast[r], 5)
                    elif I.kind == "valu":
                        if I.base in ("v_readlane_b32", "v_writelane_b32") : req(slast[r], 4)
                        else: req(slast[r], 2)
                    elif I.kind == "mfma": req(slast[r], 2)
            if I.kind == "valu" and I.dpp and ("x", "exec") in slast: req(slast[("x", "exec")], 5)
            if I.kind == "vmem" and getattr(I, "lds", False): req(m0w, 1)
        elif I.kind in ("salu", "smem", "ctl"):
            for r in getattr(I, "sr", []):
                if r in slast: req(slast[r], 1 if I.kind == "salu" else 5)
            if I.base in ("s_cbranch_vccz", "s_cbranch_vccnz") and ("x", "vcc") in slast: req(slast[("x", "vcc")], 1)
        if need > 0:
            out.append("    s_nop %d" % (need - 1)) if need <= 16 else None
            assert need <= 16
            pos += need
        out.append(line)
        if I.kind == "valu":
            k = "trans" if I.trans else ("dot" if I.dot else "valu")
            for r in I.vw: vlast[r] = (pos, k, (I.base, I.base) if I.dot else None)
            for r in I.sw: slast[r] = pos
        elif I.kind == "mfma":
            for r in I.vw: vlast[r] = (pos, "mfma", tuple(I.vw))
            for r in I.cread: cread[r] = pos
        elif I.kind in ("vmem", "ds"):
            for r in I.vw: vlast.pop(r, None)
            if I.kind == "vmem" and getattr(I, "widestore", False):
                for r in I.sdata: stdata[r] = pos
        elif I.kind in ("salu", "smem"):
            for r in I.sw:
                slast.pop(r, None)
                if r == ("x", "m0"): m0w = pos
        pos += 1
    return out
```

```python
import sys
from asmlib import *
import hazard

EPOCH = 0
QB = 4096
GB = 36864
UB = 51200
ML = 65536
FB = 73728
SB = 274432
OB = 1048576
DBGA = 4 << 20
STAMPA = 8 << 20
QS = 131072; PS = 132096; MX = 133120; LS = 133248; GU = 133376; OA = 133888
RS = 134400; RSF = RS + 2048; RED = 138496
LDS_BYTES = 163840
LOG2E = 1.4426950408889634
import struct
def f2u(x): return struct.unpack("<I", struct.pack("<f", x))[0]
C_EXP = f2u(LOG2E / 16.0)

sWAVE = 3
sX, sK, sV, sWQ, sWO, sBX, sGATE, sUP = 4, 6, 8, 10, 12, 14, 16, 18
sDOWN, sOUT, sDBG, sWS = 20, 22, 24, 26
srdK, srdV, srdW, srdWS, srdX = 28, 32, 36, 40, 44
srdOUT = 48
sTAG = 52; sHKV = 53; sB = 54; sSPLIT = 55; sD = 56
sT0, sT1, sKV, sSTR, sDEST, sCNT, sT2, sT3 = 57, 58 + 0, 59, 60, 61, 62, 63, 96
sA = 57; sBt = 58; sKVOFF = 59; sSTRIDE = 60; sDST = 61; sLOOP = 62; sC = 63
sP0 = 64
sSELLO = 96; sSELHI = 97; sM0 = 98
sIDX = 100; sDOFF = 101
vLANE = 1; vK = 2; vV0 = 3
vA = 7; vB = 8; vC = 9; vDo = 10; vE = 11; vF = 12; vG = 13; vH = 14; vI = 15
KR = 16
RAW = 48
BF = 64
DD = 80
ACC = 112
GR = 116
vJ = 120
vST = 127
AF = 124

class G:
    def __init__(self, opt):
        self.a = Asm(); self.opt = opt; self.nst = 0
    def __call__(self, s): self.a(s)
    def lab(self, n): self.a.label(n)
    def nl(self, p): return self.a.newlabel(p)
    def stamp(self, k):
        if not self.opt.get("stamps"): return
        a = self.a
        l = self.nl("L_st")
        a("s_cmp_lg_u32 s%d, 0\ns_cbranch_scc1 %s" % (sWAVE, l))
        a("s_memtime s[%d:%d]\ns_waitcnt lgkmcnt(0)\nv_writelane_b32 v%d, s%d, %d" % (sM0, sM0 + 1, vST, sM0, k))
        self.lab(l)
    def srd(self, d, p, size):
        self("s_mov_b32 s%d, s%d\ns_mov_b32 s%d, s%d\ns_mov_b32 s%d, 0x%x\ns_mov_b32 s%d, 0x20000" % (d, p, d + 1, p + 1, d + 2, size, d + 3))
    def execm(self, mask):
        if mask == -1: self("s_mov_b64 exec, -1")
        elif mask <= 64: self("s_mov_b64 exec, %d" % mask)
        elif mask < (1 << 32):
            self("s_mov_b32 exec_lo, 0x%x\ns_mov_b32 exec_hi, 0" % mask)
        else:
            self("s_mov_b32 exec_lo, 0x%x\ns_mov_b32 exec_hi, 0x%x" % (mask & 0xffffffff, mask >> 32))
    def smask(self, s, mask):
        self("s_mov_b32 s%d, 0x%x\ns_mov_b32 s%d, 0x%x" % (s, mask & 0xffffffff, s + 1, mask >> 32))
    DPPALL = "row_mask:0xf bank_mask:0xf"
    def row_allreduce(self, regs, op, steps=(8, 4, 2, 1)):
        for st in steps:
            for r in regs:
                self("%s_dpp v%d, v%d, v%d row_ror:%d %s" % (op, r, r, r, st, self.DPPALL))
    def cross16(self, regs, tmps, op):
        for r, t in zip(regs, tmps): self("v_mov_b32 v%d, v%d" % (t, r))
        for r, t in zip(regs, tmps): self("v_permlane16_swap_b32 v%d, v%d" % (r, t))
        for r, t in zip(regs, tmps): self("%s v%d, v%d, v%d" % (op, r, r, t))
    def cross32(self, regs, tmps, op):
        for r, t in zip(regs, tmps): self("v_mov_b32 v%d, v%d" % (t, r))
        for r, t in zip(regs, tmps): self("v_permlane32_swap_b32 v%d, v%d" % (r, t))
        for r, t in zip(regs, tmps): self("%s v%d, v%d, v%d" % (op, r, r, t))
    def bf16r(self, d, s):
        self("v_cvt_pk_bf16_f32 v%d, v%d, v%d\nv_lshlrev_b32 v%d, 16, v%d" % (d, s, s, d, d))

    def code_prefetch(self, role):
        self("s_getpc_b64 s[%d:%d]" % (sM0, sM0 + 1))
        self.lab("L_pc_%s" % role)
        self("s_lshl_b32 s%d, s%d, 10" % (sA, sWAVE))
        self("v_lshl_add_u32 v%d, v%d, 4, s%d" % (vA, vLANE, sA))
        self("v_min_u32 v%d, L_end_%s-L_pc_%s-16, v%d" % (vA, role, role, vA))
        self("global_load_dwordx4 v[%d:%d], v%d, s[%d:%d]" % (vJ, vJ + 3, vA, sM0, sM0 + 1))
    def issue_K(self):
        for i in range(8):
            if i % 4 == 0: self("s_add_u32 s%d, s%d, %d" % (sA, sKVOFF, i * 1024))
            self("buffer_load_dwordx4 v[%d:%d], v%d, s[%d:%d], s%d offen offset:%d nt" % (KR + 4 * i, KR + 4 * i + 3, vK, srdK, srdK + 3, sA, (i % 4) * 1024))
    def issue_V(self):
        for i in range(8):
            if i % 4 == 0:
                self("s_lshl_b32 s%d, s%d, 13\ns_add_u32 m0, s%d, %d\ns_add_u32 s%d, s%d, %d" % (sBt, sWAVE, sBt, i * 1024, sA, sKVOFF, i * 1024))
            self("buffer_load_dwordx4 v%d, s[%d:%d], s%d offen offset:%d nt lds" % (vV0 + (i % 4), srdV, srdV + 3, sA, (i % 4) * 1024))
    def issue_duty(self, stride_imm=None):
        if stride_imm is not None:
            for i in range(4):
                self("buffer_load_dwordx4 v[%d:%d], v%d, s[%d:%d], s%d offen offset:%d nt" % (RAW + 4 * i, RAW + 4 * i + 3, vDo, srdW, srdW + 3, sDOFF, i * stride_imm))
        else:
            self("s_mov_b32 s%d, s%d" % (sA, sDOFF))
            for i in range(4):
                self("buffer_load_dwordx4 v[%d:%d], v%d, s[%d:%d], s%d offen nt" % (RAW + 4 * i, RAW + 4 * i + 3, vDo, srdW, srdW + 3, sA))
                if i < 3: self("s_add_u32 s%d, s%d, s%d" % (sA, sA, sSTRIDE))
    def duty_perm(self):
        self("s_mov_b32 s%d, 0x05040100\ns_mov_b32 s%d, 0x07060302" % (sSELLO, sSELHI))
        for e in range(8):
            sel = sSELHI if e & 1 else sSELLO
            self("v_perm_b32 v%d, v%d, v%d, s%d" % (BF + 2 * e, RAW + 4 + (e >> 1), RAW + (e >> 1), sel))
            self("v_perm_b32 v%d, v%d, v%d, s%d" % (BF + 2 * e + 1, RAW + 12 + (e >> 1), RAW + 8 + (e >> 1), sel))
    def duty_mfma_post(self, vaddr, boff):
        for e in range(8):
            self("v_mfma_f32_16x16x16_bf16 v[%d:%d], v[%d:%d], v[%d:%d], 0" % (DD + 4 * e, DD + 4 * e + 3, AF, AF + 1, BF + 2 * e, BF + 2 * e + 1))
        for e in range(8):
            for b in range(2):
                self("v_add_f32_dpp v%d, v%d, v%d row_ror:8 %s" % (RAW + 8 * b + e, DD + 4 * e + 2 * b + 1, DD + 4 * e + 2 * b, self.DPPALL))
        self.execm(0xff)
        for b in range(2):
            for hh in range(2):
                self("ds_write_b128 v%d, v[%d:%d] offset:%d" % (vaddr, RAW + 8 * b + 4 * hh, RAW + 8 * b + 4 * hh + 3, b * boff + hh * 16))
        self.execm(-1)
    def poll_scalar(self, nbuf, name):
        lp = self.nl("L_ps"); dn = self.nl("L_pd")
        self("s_mov_b32 s%d, %d" % (sLOOP, self.opt.get("maxpoll", 20000)))
        self.lab(lp)
        for k in range(nbuf):
            self("s_load_dwordx16 s[%d:%d], s[%d:%d], s%d offset:%d glc" % (sP0 + 16 * k, sP0 + 16 * k + 15, sWS, sWS + 1, sA, 64 * k))
        self("s_waitcnt lgkmcnt(0)")
        tags = [sP0 + 1 + 2 * i for i in range(8 * nbuf)]
        self("s_and_b32 s%d, s%d, s%d\ns_or_b32 s%d, s%d, s%d" % (sBt, tags[0], tags[1], sC, tags[0], tags[1]))
        for t in tags[2:]:
            self("s_and_b32 s%d, s%d, s%d\ns_or_b32 s%d, s%d, s%d" % (sBt, sBt, t, sC, sC, t))
        self("s_xor_b32 s%d, s%d, s%d\ns_xor_b32 s%d, s%d, s%d\ns_or_b32 s%d, s%d, s%d" % (sBt, sBt, sTAG, sC, sC, sTAG, sBt, sBt, sC))
        self("s_cbranch_scc0 %s" % dn)
        self("s_sleep %d" % self.opt.get("sleep", 2))
        self("s_sub_u32 s%d, s%d, 1\ns_cmp_lg_u32 s%d, 0\ns_cbranch_scc1 %s" % (sLOOP, sLOOP, sLOOP, lp))
        self.lab(dn)
    def scalars_to_lds(self, n, vaddr):
        for i in range(n):
            self("v_writelane_b32 v%d, s%d, %d" % (vE, sP0 + 2 * i, i))
        self.execm((1 << n) - 1)
        self("ds_write_b32 v%d, v%d" % (vaddr, vE))
        self.execm(-1)
    def poll_vector(self, loads, tagregs):
        lp = self.nl("L_pv"); dn = self.nl("L_pvd")
        self("s_mov_b32 s%d, %d" % (sLOOP, self.opt.get("maxpoll", 20000)))
        self.lab(lp)
        for l in loads: self(l)
        self("s_waitcnt vmcnt(0)")
        self("v_xor_b32 v%d, s%d, v%d" % (vI, sTAG, tagregs[0]))
        for t in tagregs[1:]:
            self("v_xor_b32 v%d, s%d, v%d\nv_or_b32 v%d, v%d, v%d" % (vH, sTAG, t, vI, vI, vH))
        self("v_cmp_ne_u32 vcc, 0, v%d" % vI)
        self("s_cbranch_vccz %s" % dn)
        self("s_sub_u32 s%d, s%d, 1\ns_cmp_lg_u32 s%d, 0\ns_cbranch_scc1 %s" % (sLOOP, sLOOP, sLOOP, lp))
        self.lab(dn)

    def att_q(self):
        self("s_lshl_b32 s%d, s%d, 3\ns_lshr_b32 s%d, s%d, 1\ns_add_u32 s%d, s%d, s%d\ns_lshl_b32 s%d, s%d, 9" % (sA, sHKV, sBt, sWAVE, sA, sA, sBt, sA, sA))
        self("s_lshl_b32 s%d, s%d, 8\ns_add_u32 s%d, s%d, s%d" % (sBt, sB, sA, sA, sBt))
        self("s_and_b32 s%d, s%d, 1\ns_lshl_b32 s%d, s%d, 7\ns_add_u32 s%d, s%d, s%d\ns_add_u32 s%d, s%d, %d" % (sBt, sWAVE, sBt, sBt, sA, sA, sBt, sA, sA, QB))
        self("s_lshl_b32 s%d, s%d, 6\ns_add_u32 s%d, s%d, %d" % (sDST, sWAVE, sDST, sDST, QS))
        self("v_lshl_add_u32 v%d, v%d, 2, s%d" % (vF, vLANE, sDST))
        self.poll_scalar(2, "q")
        self.stamp(3)
        self.scalars_to_lds(16, vF)
        self("s_waitcnt lgkmcnt(0)\ns_barrier")
        QH = DD + 16
        self("v_and_b32 v%d, 31, v%d\nv_lshlrev_b32 v%d, 4, v%d\nv_add_u32 v%d, %d, v%d" % (vF, vLANE, vF, vF, vF, QS, vF))
        self("ds_read_b128 v[%d:%d], v%d\nds_read_b128 v[%d:%d], v%d offset:512" % (QH, QH + 3, vF, QH + 4, QH + 7, vF))
    def att_qk(self, kwait):
        QH = DD + 16; AC = DD
        self("s_waitcnt vmcnt(%d) lgkmcnt(0)" % kwait)
        self.stamp(4)
        for e in range(4):
            for i in range(8):
                for h in range(2):
                    if e == 0: self("v_dot2_f32_bf16 v%d, v%d, v%d, 0" % (AC + 2 * i + h, KR + 4 * i + e, QH + 4 * h + e))
                    else: self("v_dot2c_f32_bf16 v%d, v%d, v%d" % (AC + 2 * i + h, KR + 4 * i + e, QH + 4 * h + e))
        acc = lambda i, h: AC + 2 * i + h
        for i in range(4):
            for h in range(2): self("v_permlane16_swap_b32 v%d, v%d" % (acc(i, h), acc(i + 4, h)))
        for i in range(4):
            for h in range(2): self("v_add_f32 v%d, v%d, v%d" % (acc(i, h), acc(i, h), acc(i + 4, h)))
        for i in range(2):
            for h in range(2): self("v_add_f32_dpp v%d, v%d, v%d row_ror:8 row_mask:0xf bank_mask:0x3" % (acc(i, h), acc(i, h), acc(i, h)))
        for i in range(2):
            for h in range(2): self("v_add_f32_dpp v%d, v%d, v%d row_ror:8 row_mask:0xf bank_mask:0xc" % (acc(i, h), acc(i + 2, h), acc(i + 2, h)))
        for h in range(2): self("v_add_f32_dpp v%d, v%d, v%d row_half_mirror row_mask:0xf bank_mask:0x5" % (acc(0, h), acc(0, h), acc(0, h)))
        for h in range(2): self("v_add_f32_dpp v%d, v%d, v%d row_half_mirror row_mask:0xf bank_mask:0xa" % (acc(0, h), acc(1, h), acc(1, h)))
        for qp in ("[1,0,3,2]", "[2,3,0,1]"):
            for h in range(2): self("v_add_f32_dpp v%d, v%d, v%d quad_perm:%s %s" % (acc(0, h), acc(0, h), acc(0, h), qp, self.DPPALL))
        F0, F1 = AC, AC + 1
        self("v_cvt_pk_bf16_f32 v%d, v%d, v%d" % (AC + 2, F0, F1))
        self("v_lshlrev_b32 v%d, 16, v%d\nv_and_b32 v%d, 0xffff0000, v%d" % (F0, AC + 2, F1, AC + 2))
        M0, M1 = AC + 4, AC + 5
        self("v_max_f32_dpp v%d, v%d, v%d row_ror:4 %s\nv_max_f32_dpp v%d, v%d, v%d row_ror:4 %s" % (M0, F0, F0, self.DPPALL, M1, F1, F1, self.DPPALL))
        self.row_allreduce([M0, M1], "v_max_f32", (8,))
        self.cross16([M0, M1], [AC + 6, AC + 7], "v_max_f32")
        self.cross32([M0, M1], [AC + 6, AC + 7], "v_max_f32")
        self("s_lshl_b32 s%d, s%d, 3\ns_add_u32 s%d, s%d, %d\nv_mov_b32 v%d, s%d" % (sA, sWAVE, sA, sA, MX, vF, sA))
        self.execm(1)
        self("ds_write_b64 v%d, v[%d:%d]" % (vF, M0, M1))
        self.execm(-1)
        self("s_waitcnt lgkmcnt(0)\ns_barrier")
        self("v_and_b32 v%d, 15, v%d\nv_lshlrev_b32 v%d, 3, v%d\nv_add_u32 v%d, %d, v%d" % (vG, vLANE, vG, vG, vG, MX, vG))
        self("ds_read_b64 v[%d:%d], v%d\ns_waitcnt lgkmcnt(0)" % (M0, M1, vG))
        self.row_allreduce([M0, M1], "v_max_f32")
        P0, P1 = AC + 8, AC + 9
        self("v_sub_f32 v%d, v%d, v%d\nv_sub_f32 v%d, v%d, v%d" % (P0, F0, M0, P1, F1, M1))
        self("v_mul_f32 v%d, 0x%x, v%d\nv_mul_f32 v%d, 0x%x, v%d" % (P0, C_EXP, P0, P1, C_EXP, P1))
        self("v_exp_f32 v%d, v%d\nv_exp_f32 v%d, v%d" % (P0, P0, P1, P1))
        PK = AC + 10
        self("v_cvt_pk_bf16_f32 v%d, v%d, v%d" % (PK, P0, P1))
        self("s_lshr_b32 s%d, s%d, 1\ns_lshl_b32 s%d, s%d, 6\ns_and_b32 s%d, s%d, 1\ns_lshl_b32 s%d, s%d, 3\ns_add_u32 s%d, s%d, s%d\ns_add_u32 s%d, s%d, %d"
             % (sA, sWAVE, sA, sA, sBt, sWAVE, sBt, sBt, sA, sA, sBt, sA, sA, PS))
        self("v_bfe_u32 v%d, v%d, 3, 2\nv_lshlrev_b32 v%d, 4, v%d" % (vG, vLANE, vG, vG))
        self("v_bfe_u32 v%d, v%d, 2, 1\nv_lshl_add_u32 v%d, v%d, 2, v%d" % (vH, vLANE, vG, vH, vG))
        self("v_lshrrev_b32 v%d, 5, v%d\nv_lshl_add_u32 v%d, v%d, 1, v%d\nv_add_u32 v%d, s%d, v%d" % (vH, vLANE, vG, vH, vG, vG, sA, vG))
        S0, S1 = AC + 12, AC + 13
        self("v_add_f32_dpp v%d, v%d, v%d row_ror:4 %s\nv_add_f32_dpp v%d, v%d, v%d row_ror:4 %s" % (S0, P0, P0, self.DPPALL, S1, P1, P1, self.DPPALL))
        self.execm(0x1111111111111111)
        self("ds_write_b16 v%d, v%d\nds_write_b16_d16_hi v%d, v%d offset:512" % (vG, PK, vG, PK))
        self.execm(-1)
        self.row_allreduce([S0, S1], "v_add_f32", (8,))
        self.cross16([S0, S1], [AC + 6, AC + 7], "v_add_f32")
        self.cross32([S0, S1], [AC + 6, AC + 7], "v_add_f32")
        self.execm(1)
        self("ds_write_b64 v%d, v[%d:%d] offset:%d" % (vF, S0, S1, LS - MX))
        self.execm(-1)
        self("s_waitcnt lgkmcnt(0)\ns_barrier")
        self("v_and_b32 v%d, 1, v%d\nv_lshlrev_b32 v%d, 9, v%d\nv_lshrrev_b32 v%d, 4, v%d\nv_lshl_add_u32 v%d, v%d, 4, v%d\nv_add_u32 v%d, %d, v%d"
             % (vG, vLANE, vG, vG, vH, vLANE, vG, vH, vG, vG, PS, vG))
        for T in range(8):
            self("ds_read_b128 v[%d:%d], v%d offset:%d" % (KR + 4 * T, KR + 4 * T + 3, vG, T * 64))
        l = self.nl("L_noml")
        self("s_cmp_lg_u32 s%d, 0\ns_cbranch_scc1 %s" % (sWAVE, l))
        self("v_and_b32 v%d, 15, v%d\nv_lshlrev_b32 v%d, 3, v%d\nv_bfe_u32 v%d, v%d, 4, 1\nv_lshl_add_u32 v%d, v%d, 2, v%d\nv_add_u32 v%d, %d, v%d"
             % (vG, vLANE, vG, vG, vH, vLANE, vG, vH, vG, vG, LS, vG))
        self("ds_read_b32 v%d, v%d" % (GR + 2, vG))
        self.smask(sM0, 0xFFFF0000)
        self("v_cndmask_b32 v%d, v%d, v%d, s[%d:%d]" % (GR, M0, M1, sM0, sM0 + 1))
        self("v_mov_b32 v%d, s%d\nv_mov_b32 v%d, s%d" % (GR + 1, sTAG, GR + 3, sTAG))
        self("v_lshlrev_b32 v%d, 8, v%d" % (vH, vH))
        self("s_lshl_b32 s%d, s%d, 4\ns_lshl_b32 s%d, s%d, 1\ns_add_u32 s%d, s%d, s%d\ns_lshl_b32 s%d, s%d, 4\ns_add_u32 s%d, s%d, s%d\ns_lshl_b32 s%d, s%d, 4\ns_add_u32 s%d, s%d, %d"
             % (sA, sB, sBt, sHKV, sA, sA, sBt, sA, sA, sA, sA, sSPLIT, sA, sA, sA, sA, ML))
        self("s_waitcnt lgkmcnt(0)")
        self.row_allreduce([GR + 2], "v_add_f32")
        self.execm(0x10001)
        self("buffer_store_dwordx4 v[%d:%d], v%d, s[%d:%d], s%d offen sc1" % (GR, GR + 3, vH, srdWS, srdWS + 3, sA))
        self.execm(-1)
        self.lab(l)
        self.stamp(5)
    def att_pv(self, vwait):
        VB = DD
        self("v_lshrrev_b32 v%d, 2, v%d\nv_and_b32 v%d, 7, v%d\nv_xor_b32 v%d, s%d, v%d\nv_lshlrev_b32 v%d, 5, v%d" % (vF, vLANE, vG, vF, vG, sWAVE, vG, vG, vG))
        self("v_lshl_add_u32 v%d, v%d, 9, v%d\nv_and_b32 v%d, 3, v%d\nv_lshl_add_u32 v%d, v%d, 3, v%d\nv_add_u32 v%d, 0x10000, v%d" % (vF, vF, vG, vG, vLANE, vF, vG, vF, vG, vF))
        self("v_lshrrev_b32 v%d, 4, v%d\nv_lshlrev_b32 v%d, 16, v%d\nv_and_b32 v%d, 15, v%d\nv_lshl_add_u32 v%d, v%d, 3, v%d" % (vH, vLANE, vH, vH, vI, vLANE, vH, vI, vH))
        self("s_lshl_b32 s%d, s%d, 3\ns_lshr_b32 s%d, s%d, 2\ns_add_u32 s%d, s%d, s%d\ns_lshl_b32 s%d, s%d, 14" % (sA, sHKV, sBt, sWAVE, sA, sA, sBt, sA, sA))
        self("s_lshl_b32 s%d, s%d, 13\ns_add_u32 s%d, s%d, s%d\ns_lshl_b32 s%d, s%d, 9\ns_add_u32 s%d, s%d, s%d" % (sBt, sB, sA, sA, sBt, sBt, sSPLIT, sA, sA, sBt))
        self("s_and_b32 s%d, s%d, 3\ns_lshl_b32 s%d, s%d, 7\ns_add_u32 s%d, s%d, s%d\ns_add_u32 s%d, s%d, %d" % (sBt, sWAVE, sBt, sBt, sA, sA, sBt, sDST, sA, OB))
        self("v_mov_b32 v%d, s%d" % (GR + 1, sTAG))
        self("s_waitcnt vmcnt(%d) lgkmcnt(0)\ns_barrier" % vwait)
        self.stamp(6)
        for T in range(8):
            base = vF if T < 4 else vG
            o = (T % 4) * 16384
            self("ds_read_b64_tr_b16 v[%d:%d], v%d offset:%d" % (VB + 4 * T, VB + 4 * T + 1, base, o))
            self("ds_read_b64_tr_b16 v[%d:%d], v%d offset:%d" % (VB + 4 * T + 2, VB + 4 * T + 3, base, o + 8192))
        for T in range(8):
            self("s_waitcnt lgkmcnt(%d)" % (14 - 2 * T))
            self("v_mfma_f32_16x16x32_bf16 v[%d:%d], v[%d:%d], v[%d:%d], %s" % (ACC, ACC + 3, KR + 4 * T, KR + 4 * T + 3, VB + 4 * T, VB + 4 * T + 3, "0" if T == 0 else "v[%d:%d]" % (ACC, ACC + 3)))
        self("v_permlane16_swap_b32 v%d, v%d" % (ACC, ACC + 1))
        self("v_mov_b32 v%d, v%d" % (GR, ACC))
        self.execm(0xFFFFFFFF)
        self("buffer_store_dwordx2 v[%d:%d], v%d, s[%d:%d], s%d offen sc1" % (GR, GR + 1, vH, srdWS, srdWS + 3, sDST))
        self.execm(-1)
        self.stamp(7)
    def duty_lane_addr(self, stride_sgpr=None, stride_imm=None):
        self("v_lshrrev_b32 v%d, 3, v%d\nv_and_b32 v%d, 7, v%d\nv_lshlrev_b32 v%d, 4, v%d" % (vA, vLANE, vDo, vLANE, vDo, vDo))
        if stride_imm is not None:
            self("v_mul_u32_u24 v%d, %d, v%d\nv_add_u32 v%d, v%d, v%d" % (vA, 4 * stride_imm, vA, vDo, vDo, vA))
        else:
            self("s_lshl_b32 s%d, s%d, 2\nv_mul_u32_u24 v%d, s%d, v%d\nv_add_u32 v%d, v%d, v%d" % (sA, stride_sgpr, vA, sA, vA, vDo, vDo, vA))
    def rowblock_setup(self):
        self("s_cmp_ge_u32 s%d, 7\ns_cselect_b32 s%d, 1, 0\ns_cmp_ge_u32 s%d, 14\ns_cselect_b32 s%d, 2, s%d" % (sWAVE, sC, sWAVE, sC, sC))
        self("s_mul_i32 s%d, s%d, 7\ns_sub_u32 s%d, s%d, s%d" % (sA, sC, sSTRIDE, sWAVE, sA))
        self("s_mul_i32 s%d, s%d, 57344\ns_mul_i32 s%d, s%d, %d\ns_add_u32 s%d, s%d, s%d\ns_lshl_b32 s%d, s%d, 7\ns_add_u32 s%d, s%d, s%d"
             % (sDOFF, sIDX, sA, sC, 32 * 896, sDOFF, sDOFF, sA, sA, sSTRIDE, sDOFF, sDOFF, sA))
        self("s_cmp_ge_u32 s%d, 14\ns_cselect_b32 s%d, 0x40000000, s%d" % (sWAVE, sDOFF, sDOFF))
        self("s_mov_b32 s48, s%d\ns_mov_b32 s49, s%d" % (sC, sSTRIDE))
        self.duty_lane_addr(stride_imm=896)
    def rowblock_redaddr(self, v):
        self("s_mul_i32 s%d, s48, 3584\ns_lshl_b32 s%d, s49, 8\ns_add_u32 s%d, s%d, s%d\ns_add_u32 s%d, s%d, %d" % (sA, sBt, sA, sA, sBt, sA, sA, RED))
        self("v_lshl_add_u32 v%d, v%d, 5, s%d" % (v, vLANE, sA))
    def afrag_elem_off(self, v, t, rowsgpr):
        self("v_bfe_u32 v%d, v%d, 1, 1\nv_lshlrev_b32 v%d, 7, v%d\nv_lshrrev_b32 v%d, 4, v%d\nv_lshl_add_u32 v%d, v%d, 4, v%d" % (v, vLANE, v, v, t, vLANE, v, t, v))
        self("v_and_b32 v%d, 1, v%d\nv_lshl_add_u32 v%d, v%d, 3, v%d\ns_lshl_b32 s%d, s%d, 6\nv_add_u32 v%d, s%d, v%d" % (t, vLANE, v, t, v, sA, rowsgpr, v, sA, v))
    def publish448(self, base, strideR):
        l = self.nl("L_nopub")
        self("s_cmp_ge_u32 s%d, 7\ns_cbranch_scc1 %s" % (sWAVE, l))
        self("v_lshrrev_b32 v%d, 4, v%d\ns_lshl_b32 s%d, s%d, 2\nv_add_u32 v%d, s%d, v%d" % (vF, vLANE, sA, sWAVE, vF, sA, vF))
        self("v_bfe_u32 v%d, v%d, 3, 1\nv_mul_u32_u24 v%d, 1792, v%d" % (vG, vLANE, vG, vG))
        self("v_lshl_add_u32 v%d, v%d, 6, v%d\nv_and_b32 v%d, 7, v%d\nv_lshl_add_u32 v%d, v%d, 3, v%d\nv_add_u32 v%d, %d, v%d" % (vG, vF, vG, vH, vLANE, vG, vH, vG, vG, RED, vG))
        self("ds_read_b64 v[%d:%d], v%d\nds_read_b64 v[%d:%d], v%d offset:3584" % (DD, DD + 1, vG, DD + 2, DD + 3, vG))
        self("v_mul_u32_u24 v%d, %d, v%d\nv_and_b32 v%d, 15, v%d\nv_lshl_add_u32 v%d, v%d, 4, v%d" % (vF, strideR, vF, vH, vLANE, vF, vH, vF))
        self("s_lshl_b32 s%d, s%d, 8\ns_add_u32 s%d, s%d, %d" % (sA, sIDX, sA, sA, base))
        self("v_mov_b32 v%d, s%d\nv_mov_b32 v%d, s%d" % (GR + 1, sTAG, GR + 3, sTAG))
        self("s_waitcnt lgkmcnt(0)")
        self("v_add_f32 v%d, v%d, v%d\nv_add_f32 v%d, v%d, v%d" % (GR, DD, DD + 2, GR + 2, DD + 1, DD + 3))
        self("buffer_store_dwordx4 v[%d:%d], v%d, s[%d:%d], s%d offen sc1" % (GR, GR + 3, vF, srdWS, srdWS + 3, sA))
        self.lab(l)
    def finish(self, role):
        if self.opt.get("stamps"):
            l = self.nl("L_nost")
            self("s_cmp_lg_u32 s%d, 0\ns_cbranch_scc1 %s" % (sWAVE, l))
            self.stamp(15)
            self("s_lshl_b32 s%d, s2, 8\ns_add_u32 s%d, s%d, %d" % (sA, sA, sA, STAMPA))
            self("v_lshlrev_b32 v%d, 2, v%d" % (vF, vLANE))
            self("buffer_store_dword v%d, v%d, s[%d:%d], s%d offen" % (vST, vF, srdWS, srdWS + 3, sA))
            self.lab(l)
        self("s_endpgm")
        self.lab("L_end_%s" % role)

    def prologue(self):
        self("s_cmp_ge_u32 s2, 256\ns_cbranch_scc1 L_exit")
        self("s_load_dwordx16 s[4:19], s[0:1], 0\ns_load_dwordx8 s[20:27], s[0:1], 64")
        self("v_and_b32 v%d, 63, v0\nv_lshrrev_b32 v%d, 6, v0" % (vLANE, vA))
        self("s_and_b32 s%d, s2, 7\ns_lshr_b32 s%d, s2, 3" % (sHKV, sD))
        self("v_readfirstlane_b32 s%d, v%d" % (sWAVE, vA))
        self("s_and_b32 s%d, s%d, 1\ns_lshr_b32 s%d, s%d, 1" % (sB, sD, sSPLIT, sD))
        self("s_lshl_b32 s%d, s%d, 3\ns_add_u32 s%d, s%d, s%d\ns_lshl_b32 s%d, s%d, 15\ns_add_u32 s%d, s%d, 28672" % (sA, sB, sA, sA, sHKV, sA, sA, sA, sA))
        self("s_lshl_b32 s%d, s%d, 8\ns_add_u32 s%d, s%d, s%d\ns_lshl_b32 s%d, s%d, 4\ns_add_u32 s%d, s%d, s%d\ns_lshl_b32 s%d, s%d, 9" % (sBt, sSPLIT, sA, sA, sBt, sBt, sWAVE, sA, sA, sBt, sKVOFF, sA))
        self("v_lshlrev_b32 v%d, 4, v%d" % (vK, vLANE))
        self("v_lshrrev_b32 v%d, 5, v%d\nv_and_b32 v%d, 31, v%d\nv_lshlrev_b32 v%d, 1, v%d\nv_xor_b32 v%d, v%d, v%d" % (vA, vLANE, vB, vLANE, vC, vA, vB, vB, vC))
        self("v_lshlrev_b32 v%d, 4, v%d\nv_lshl_add_u32 v%d, v%d, 9, v%d" % (vB, vB, vV0, vA, vB))
        self("v_xor_b32 v%d, 64, v%d\nv_xor_b32 v%d, 0x80, v%d\nv_xor_b32 v%d, 0xc0, v%d" % (vV0 + 1, vV0, vV0 + 2, vV0, vV0 + 3, vV0))
        if self.opt.get("stamps"):
            self("v_mov_b32 v%d, 0" % vST)
        self("s_sub_u32 s%d, s%d, 8\ns_lshl_b32 s%d, s%d, 3\ns_add_u32 s%d, s%d, s%d" % (sIDX, sD, sIDX, sIDX, sIDX, sIDX, sHKV))
        self("s_waitcnt lgkmcnt(0)")
        self("s_load_dword s%d, s[%d:%d], 0 glc" % (sTAG, sWS, sWS + 1))
        if self.opt.get("stamps"):
            l = self.nl("L_st0")
            self("s_cmp_lg_u32 s%d, 0\ns_cbranch_scc1 %s" % (sWAVE, l))
            self("s_memrealtime s[%d:%d]\ns_waitcnt lgkmcnt(0)\nv_writelane_b32 v%d, s%d, 0" % (sM0, sM0 + 1, vST, sM0))
            self.lab(l)
            self.stamp(1)
        self.srd(srdK, sK, 0x10000000); self.srd(srdV, sV, 0x10000000); self.srd(srdWS, sWS, 0x40000000)
        self("s_cmp_lt_u32 s%d, 8\ns_cbranch_scc1 R_Q" % sD)
        self("s_cmp_lt_u32 s%d, 56\ns_cbranch_scc1 R_GU" % sIDX)
        self("s_cmp_lt_u32 s%d, 84\ns_cbranch_scc1 R_D" % sIDX)
        self("s_cmp_lt_u32 s%d, 148\ns_cbranch_scc1 R_WO" % sIDX)
        self("s_cmp_lt_u32 s%d, 176\ns_cbranch_scc1 R_R" % sIDX)
        self("s_branch R_N")
    def tag_ready(self):
        self("s_waitcnt lgkmcnt(0)\ns_add_u32 s%d, s%d, 1" % (sTAG, sTAG))
    def role_QGU(self):
        self.lab("R_Q")
        self("s_lshl_b32 s%d, s%d, 3\ns_add_u32 s%d, s%d, s%d" % (sIDX, sHKV, sIDX, sIDX, sD))
        self.srd(srdW, sWQ, 448 * 4096 * 2)
        self("s_mov_b32 s%d, 8192\ns_lshl_b32 s%d, s%d, 9\ns_add_u32 s%d, s%d, %d\ns_branch R_QGU" % (sSTRIDE, sDST, sIDX, sDST, sDST, QB))
        self.lab("R_GU")
        self.srd(srdW, sGATE, 448 * 1792 * 2)
        self("s_mov_b32 s%d, %d\ns_cmp_lt_u32 s%d, 28\ns_cbranch_scc1 L_isg" % (sDST, GB, sIDX))
        self("s_mov_b32 s%d, s%d\ns_mov_b32 s%d, s%d\ns_sub_u32 s%d, s%d, 28\ns_mov_b32 s%d, %d" % (srdW, sUP, srdW + 1, sUP + 1, sIDX, sIDX, sDST, UB))
        self.lab("L_isg")
        self("s_mov_b32 s%d, 3584\ns_lshl_b32 s%d, s%d, 9\ns_add_u32 s%d, s%d, s%d" % (sSTRIDE, sA, sIDX, sDST, sDST, sA))
        self.lab("R_QGU")
        self.code_prefetch("QGU")
        self.srd(srdX, sX, 1792)
        XR = DD
        self("v_lshrrev_b32 v%d, 5, v%d\nv_mul_u32_u24 v%d, 896, v%d\nv_and_b32 v%d, 31, v%d\nv_lshl_add_u32 v%d, v%d, 5, v%d" % (vA, vLANE, vA, vA, vC, vLANE, vB, vC, vA))
        self("v_cmp_le_u32 vcc, 28, v%d\nv_mov_b32 v%d, 0x10000000\nv_cndmask_b32 v%d, v%d, v%d, vcc" % (vC, vC, vB, vB, vC))
        self("buffer_load_dwordx4 v[%d:%d], v%d, s[%d:%d], 0 offen\nbuffer_load_dwordx4 v[%d:%d], v%d, s[%d:%d], 0 offen offset:16" % (XR, XR + 3, vB, srdX, srdX + 3, XR + 4, XR + 7, vB, srdX, srdX + 3))
        self("v_bfe_u32 v%d, v%d, 1, 1\nv_mul_u32_u24 v%d, 896, v%d\nv_lshrrev_b32 v%d, 4, v%d\nv_lshl_add_u32 v%d, v%d, 4, v%d" % (vA, vLANE, vA, vA, vC, vLANE, vA, vC, vA))
        self("v_and_b32 v%d, 1, v%d\nv_lshl_add_u32 v%d, v%d, 3, v%d\ns_lshl_b32 s%d, s%d, 6" % (vC, vLANE, vA, vC, vA, sA, sWAVE))
        self("buffer_load_dwordx2 v[%d:%d], v%d, s[%d:%d], s%d offen" % (XR + 8, XR + 9, vA, srdX, srdX + 3, sA))
        self("s_lshl_b32 s%d, s%d, 5\ns_mul_i32 s%d, s%d, s%d\ns_lshl_b32 s%d, s%d, 7\ns_add_u32 s%d, s%d, s%d" % (sA, sWAVE, sA, sA, sSTRIDE, sDOFF, sIDX, sDOFF, sDOFF, sA))
        self.duty_lane_addr(stride_sgpr=sSTRIDE)
        self.issue_duty()
        self.issue_K(); self.issue_V()
        self.stamp(2)
        FX = DD + 16
        self("s_waitcnt vmcnt(20)")
        for i in range(8):
            self("v_lshlrev_b32 v%d, 16, v%d\nv_and_b32 v%d, 0xffff0000, v%d" % (FX + 2 * i, XR + i, FX + 2 * i + 1, XR + i))
        S = 112; T = 113; U2 = 114; W2 = 115
        self("v_add_f32 v%d, v%d, v%d\nv_add_f32 v%d, v%d, v%d\nv_add_f32 v%d, v%d, v%d\nv_add_f32 v%d, v%d, v%d" % (S, FX, FX + 1, T, FX + 2, FX + 3, U2, FX + 4, FX + 5, W2, FX + 6, FX + 7))
        for k, r in enumerate((S, T, U2, W2)):
            self("v_add_f32 v%d, v%d, v%d" % (r, r, FX + 8 + 2 * k))
        for k, r in enumerate((S, T, U2, W2)):
            self("v_add_f32 v%d, v%d, v%d" % (r, r, FX + 9 + 2 * k))
        self("v_add_f32 v%d, v%d, v%d\nv_add_f32 v%d, v%d, v%d\nv_add_f32 v%d, v%d, v%d" % (S, S, T, U2, U2, W2, S, S, U2))
        self.row_allreduce([S], "v_add_f32"); self.cross16([S], [T], "v_add_f32")
        self("v_mul_f32 v%d, 0x%x, v%d" % (S, f2u(1.0 / 448), S))
        for i in range(16): self("v_sub_f32 v%d, v%d, v%d" % (FX + i, FX + i, S))
        self("v_mul_f32 v%d, v%d, v%d\nv_mul_f32 v%d, v%d, v%d\nv_mul_f32 v%d, v%d, v%d\nv_mul_f32 v%d, v%d, v%d" % (T, FX, FX, U2, FX + 1, FX + 1, W2, FX + 2, FX + 2, vE, FX + 3, FX + 3))
        for i in range(4, 16): self("v_fmac_f32 v%d, v%d, v%d" % ((T, U2, W2, vE)[i % 4], FX + i, FX + i))
        self("v_add_f32 v%d, v%d, v%d\nv_add_f32 v%d, v%d, v%d\nv_add_f32 v%d, v%d, v%d" % (T, T, U2, W2, W2, vE, T, T, W2))
        self.smask(sM0, 0x0FFFFFFF0FFFFFFF)
        self("v_cndmask_b32 v%d, 0, v%d, s[%d:%d]" % (T, T, sM0, sM0 + 1))
        self.row_allreduce([T], "v_add_f32"); self.cross16([T], [U2], "v_add_f32")
        self("v_mul_f32 v%d, 0x%x, v%d" % (T, f2u(1.0 / 448), T))
        self.bf16r(S, S); self.bf16r(T, T)
        self("v_add_f32 v%d, 0x%x, v%d" % (T, f2u(1e-5), T))
        self.bf16r(T, T)
        self("v_sqrt_f32 v%d, v%d" % (T, T))
        self.bf16r(T, T)
        self("v_mov_b32 v%d, v%d\nv_mov_b32 v%d, v%d" % (U2, S, W2, T))
        self("v_permlane32_swap_b32 v%d, v%d\nv_permlane32_swap_b32 v%d, v%d" % (S, U2, T, W2))
        self.smask(sM0, 0xCCCCCCCCCCCCCCCC)
        self("v_cndmask_b32 v%d, v%d, v%d, s[%d:%d]\nv_cndmask_b32 v%d, v%d, v%d, s[%d:%d]" % (S, S, U2, sM0, sM0 + 1, T, T, W2, sM0, sM0 + 1))
        self("v_rcp_f32 v%d, v%d" % (U2, T))
        XA = XR + 8
        E = FX
        self("v_lshlrev_b32 v%d, 16, v%d\nv_and_b32 v%d, 0xffff0000, v%d\nv_lshlrev_b32 v%d, 16, v%d\nv_and_b32 v%d, 0xffff0000, v%d" % (E, XA, E + 1, XA, E + 2, XA + 1, E + 3, XA + 1))
        for k in range(4): self("v_sub_f32 v%d, v%d, v%d" % (E + k, E + k, S))
        self("v_cvt_pk_bf16_f32 v%d, v%d, v%d\nv_cvt_pk_bf16_f32 v%d, v%d, v%d" % (E + 4, E, E + 1, E + 5, E + 2, E + 3))
        self("v_lshlrev_b32 v%d, 16, v%d\nv_and_b32 v%d, 0xffff0000, v%d\nv_lshlrev_b32 v%d, 16, v%d\nv_and_b32 v%d, 0xffff0000, v%d" % (E, E + 4, E + 1, E + 4, E + 2, E + 5, E + 3, E + 5))
        for k in range(4): self("v_mul_f32 v%d, v%d, v%d" % (E + 4 + k, E + k, U2))
        for k in range(4): self("v_fma_f32 v%d, -v%d, v%d, v%d" % (E + 8 + k, E + 4 + k, T, E + k))
        for k in range(4): self("v_fmac_f32 v%d, v%d, v%d" % (E + 4 + k, E + 8 + k, U2))
        self("v_cvt_pk_bf16_f32 v%d, v%d, v%d\nv_cvt_pk_bf16_f32 v%d, v%d, v%d" % (AF, E + 4, E + 5, AF + 1, E + 6, E + 7))
        self("s_waitcnt vmcnt(16)")
        self.duty_perm()
        self("s_lshl_b32 s%d, s%d, 9\ns_add_u32 s%d, s%d, %d\nv_lshl_add_u32 v%d, v%d, 5, s%d" % (sA, sWAVE, sA, sA, RED, vF, vLANE, sA))
        self.duty_mfma_post(vF, 256)
        self.tag_ready()
        self("s_barrier")
        l = self.nl("L_nopubq")
        self("s_cmp_lg_u32 s%d, 0\ns_cbranch_scc1 %s" % (sWAVE, l))
        self("v_lshrrev_b32 v%d, 5, v%d\nv_lshlrev_b32 v%d, 12, v%d\nv_and_b32 v%d, 31, v%d\nv_lshlrev_b32 v%d, 4, v%d\nv_add_u32 v%d, v%d, v%d\nv_add_u32 v%d, %d, v%d"
             % (vF, vLANE, vF, vF, vG, vLANE, vG, vG, vF, vF, vG, vF, RED, vF))
        for k in range(8): self("ds_read_b128 v[%d:%d], v%d offset:%d" % (DD + 4 * k, DD + 4 * k + 3, vF, k * 512))
        self("s_waitcnt lgkmcnt(0)")
        for st in (4, 2, 1):
            for k in range(st):
                for j in range(4): self("v_add_f32 v%d, v%d, v%d" % (DD + 4 * k + j, DD + 4 * k + j, DD + 4 * (k + st) + j))
        self.cross32([DD, DD + 1, DD + 2, DD + 3], [DD + 4, DD + 5, DD + 6, DD + 7], "v_add_f32")
        self("v_cvt_pk_bf16_f32 v%d, v%d, v%d\nv_cvt_pk_bf16_f32 v%d, v%d, v%d" % (GR, DD, DD + 1, GR + 2, DD + 2, DD + 3))
        self("v_mov_b32 v%d, s%d\nv_mov_b32 v%d, s%d" % (GR + 1, sTAG, GR + 3, sTAG))
        self.execm(0xFFFFFFFF)
        self("buffer_store_dwordx4 v[%d:%d], v%d, s[%d:%d], s%d offen sc1" % (GR, GR + 3, vG, srdWS, srdWS + 3, sDST))
        self.execm(-1)
        self.lab(l)
        self.stamp(8)
        self.att_q(); self.att_qk(8); self.att_pv(0)
        self.finish("QGU")
    def role_D(self):
        self.lab("R_D")
        self.code_prefetch("D")
        self("s_sub_u32 s%d, s%d, 56" % (sIDX, sIDX))
        self.srd(srdW, sDOWN, 1792 * 448 * 2)
        self.rowblock_setup()
        self.issue_K(); self.issue_duty(stride_imm=896); self.issue_V()
        self.stamp(2)
        self.tag_ready()
        self.att_q(); self.att_qk(12)
        self("s_lshr_b32 s%d, s%d, 3\ns_mul_i32 s%d, s%d, %d\ns_lshl_b32 s%d, s%d, 9\ns_add_u32 s%d, s%d, s%d\ns_and_b32 s%d, s%d, 7\ns_lshl_b32 s%d, s%d, 6\ns_add_u32 s%d, s%d, s%d\ns_add_u32 s%d, s%d, %d"
             % (sA, sWAVE, sA, sA, UB - GB, sBt, sIDX, sA, sA, sBt, sBt, sWAVE, sBt, sBt, sA, sA, sBt, sA, sA, GB))
        self("s_lshl_b32 s%d, s%d, 5\ns_add_u32 s%d, s%d, %d\nv_lshl_add_u32 v%d, v%d, 2, s%d" % (sDST, sWAVE, sDST, sDST, GU, vF, vLANE, sDST))
        self.poll_scalar(1, "gu")
        self.scalars_to_lds(8, vF)
        self("s_waitcnt lgkmcnt(0)\ns_barrier")
        self.afrag_elem_off(vF, vG, 48)
        self("v_add_u32 v%d, %d, v%d" % (vF, GU, vF))
        self("ds_read_b64 v[%d:%d], v%d\nds_read_b64 v[%d:%d], v%d offset:256" % (DD, DD + 1, vF, DD + 2, DD + 3, vF))
        self("s_waitcnt vmcnt(8)")
        self.duty_perm()
        self("s_waitcnt lgkmcnt(0)")
        for k in range(4):
            self("v_lshlrev_b32 v%d, 16, v%d\nv_and_b32 v%d, 0xffff0000, v%d" % (DD + 4 + 2 * k, DD + k, DD + 5 + 2 * k, DD + k))
        for k in range(4): self("v_mul_f32 v%d, v%d, v%d" % (DD + 4 + k, DD + 4 + k, DD + 8 + k))
        self("v_cvt_pk_bf16_f32 v%d, v%d, v%d\nv_cvt_pk_bf16_f32 v%d, v%d, v%d" % (AF, DD + 4, DD + 5, AF + 1, DD + 6, DD + 7))
        self.rowblock_redaddr(vF)
        self.duty_mfma_post(vF, 1792)
        self("s_waitcnt lgkmcnt(0)\ns_barrier")
        self.publish448(FB, 28 * 256)
        self.stamp(8)
        self.att_pv(0)
        self.finish("D")
    def role_WO(self):
        self.lab("R_WO")
        self.code_prefetch("WO")
        self("s_sub_u32 s%d, s%d, 84" % (sIDX, sIDX))
        self.srd(srdW, sWO, 4096 * 448 * 2)
        self.rowblock_setup()
        self.issue_K(); self.issue_V(); self.issue_duty(stride_imm=896)
        self.stamp(2)
        self.tag_ready()
        self.att_q(); self.att_qk(12); self.att_pv(4)
        self("s_waitcnt vmcnt(1)")
        self.duty_perm()
        self("v_and_b32 v%d, 15, v%d\nv_lshrrev_b32 v%d, 4, v%d\nv_lshlrev_b32 v%d, 4, v%d\nv_lshl_add_u32 v%d, v%d, 9, v%d\nv_lshlrev_b32 v%d, 4, v%d"
             % (vF, vLANE, vG, vLANE, vE, vG, vE, vF, vE, vF, vF))
        self("s_and_b32 s%d, s%d, 1\ns_lshr_b32 s%d, s%d, 1" % (sC, sWAVE, sSTRIDE, sWAVE))
        self("s_lshl_b32 s%d, s%d, 14\ns_lshl_b32 s%d, s%d, 13\ns_add_u32 s%d, s%d, s%d\ns_lshl_b32 s%d, s%d, 6\ns_add_u32 s%d, s%d, s%d\ns_add_u32 s%d, s%d, %d"
             % (sDST, sIDX, sA, sC, sDST, sDST, sA, sA, sSTRIDE, sDST, sDST, sA, sDST, sDST, OB))
        self("s_lshr_b32 s%d, s%d, 2\ns_lshl_b32 s%d, s%d, 4\ns_add_u32 s%d, s%d, s%d\ns_lshl_b32 s%d, s%d, 8\ns_add_u32 s%d, s%d, %d"
             % (sDOFF, sIDX, sA, sC, sDOFF, sDOFF, sA, sDOFF, sDOFF, sDOFF, sDOFF, ML))
        self("s_lshl_b32 s%d, s%d, 7\ns_lshl_b32 s%d, s%d, 4\ns_add_u32 s%d, s%d, s%d\ns_add_u32 s%d, s%d, %d\nv_lshl_add_u32 v%d, v%d, 2, s%d"
             % (sA, sC, sBt, sSTRIDE, sA, sA, sBt, sA, sA, OA, vG, vG, sA))
        self.poll_vector(["buffer_load_dwordx4 v[%d:%d], v%d, s[%d:%d], s%d offen sc1" % (DD, DD + 3, vE, srdWS, srdWS + 3, sDST),
                          "buffer_load_dwordx4 v[%d:%d], v%d, s[%d:%d], s%d offen sc1" % (DD + 4, DD + 7, vF, srdWS, srdWS + 3, sDOFF)],
                         [DD + 1, DD + 3, DD + 5, DD + 7])
        self.stamp(9)
        Mx = DD + 8; Wt = DD + 9; Lw = DD + 10
        self("v_mov_b32 v%d, v%d" % (Mx, DD + 4))
        self.row_allreduce([Mx], "v_max_f32")
        self("v_sub_f32 v%d, v%d, v%d\nv_mul_f32 v%d, 0x%x, v%d\nv_exp_f32 v%d, v%d\nv_mul_f32 v%d, v%d, v%d" % (Wt, DD + 4, Mx, Wt, C_EXP, Wt, Wt, Wt, Lw, Wt, DD + 6))
        self("v_mul_f32 v%d, v%d, v%d\nv_mul_f32 v%d, v%d, v%d" % (DD, DD, Wt, DD + 2, DD + 2, Wt))
        self.row_allreduce([Lw, DD, DD + 2], "v_add_f32")
        self("v_rcp_f32 v%d, v%d\nv_mul_f32 v%d, v%d, v%d\nv_mul_f32 v%d, v%d, v%d" % (Lw, Lw, DD, DD, Lw, DD + 2, DD + 2, Lw))
        self("v_cvt_pk_bf16_f32 v%d, v%d, v%d" % (DD + 1, DD, DD + 2))
        self.execm(0x0001000100010001)
        self("ds_write_b32 v%d, v%d" % (vG, DD + 1))
        self.execm(-1)
        self.afrag_elem_off(vF, vG, 48)
        self("v_add_u32 v%d, %d, v%d" % (vF, OA, vF))
        self("s_waitcnt lgkmcnt(0)\ns_barrier")
        self("ds_read_b64 v[%d:%d], v%d" % (AF, AF + 1, vF))
        self.rowblock_redaddr(vF)
        self("s_waitcnt lgkmcnt(0)")
        self.duty_mfma_post(vF, 1792)
        self("s_waitcnt lgkmcnt(0)\ns_barrier")
        self.publish448(SB, 64 * 256)
        self.stamp(10)
        self.finish("WO")
    def role_R(self):
        self.lab("R_R")
        self.code_prefetch("R")
        self("s_sub_u32 s%d, s%d, 148" % (sIDX, sIDX))
        self.issue_K(); self.issue_V()
        self.stamp(2)
        self.tag_ready()
        self.att_q(); self.att_qk(8); self.att_pv(0)
        self.srd(srdX, sX, 1792); self.srd(srdOUT, sOUT, 1792)
        XV = 48; VO = 49
        self("v_bfe_u32 v%d, v%d, 4, 1\nv_mul_u32_u24 v%d, 896, v%d\nv_and_b32 v%d, 15, v%d\nv_lshl_add_u32 v%d, v%d, 1, v%d\ns_lshl_b32 s%d, s%d, 5\nv_add_u32 v%d, s%d, v%d"
             % (VO, vLANE, VO, VO, vF, vLANE, VO, vF, VO, sA, sIDX, VO, sA, VO))
        self("buffer_load_ushort v%d, v%d, s[%d:%d], 0 offen" % (XV, VO, srdX, srdX + 3))
        l = self.nl("L_nof")
        self("s_cmp_ge_u32 s%d, 7\ns_cbranch_scc1 %s" % (sWAVE, l))
        self("s_mul_i32 s%d, s%d, %d\ns_lshl_b32 s%d, s%d, 10\ns_add_u32 s%d, s%d, s%d\ns_add_u32 s%d, s%d, %d" % (sDST, sIDX, 28 * 256, sA, sWAVE, sDST, sDST, sA, sDST, sDST, FB))
        self.poll_vector(["buffer_load_dwordx4 v[%d:%d], v%d, s[%d:%d], s%d offen sc1" % (DD, DD + 3, vK, srdWS, srdWS + 3, sDST)], [DD + 1, DD + 3])
        self.cross16([DD, DD + 2], [DD + 4, DD + 5], "v_add_f32"); self.cross32([DD, DD + 2], [DD + 4, DD + 5], "v_add_f32")
        self("v_mov_b32 v%d, v%d\ns_lshl_b32 s%d, s%d, 7\ns_add_u32 s%d, s%d, %d\nv_lshl_add_u32 v%d, v%d, 3, s%d" % (DD + 1, DD + 2, sA, sWAVE, sA, sA, RSF, vF, vLANE, sA))
        self.execm(0xFFFF)
        self("ds_write_b64 v%d, v[%d:%d]" % (vF, DD, DD + 1))
        self.execm(-1)
        self.lab(l)
        self.stamp(9)
        self("s_lshl_b32 s%d, s%d, 14\ns_lshl_b32 s%d, s%d, 10\ns_add_u32 s%d, s%d, s%d\ns_add_u32 s%d, s%d, %d" % (sDST, sIDX, sA, sWAVE, sDST, sDST, sA, sDST, sDST, SB))
        self.poll_vector(["buffer_load_dwordx4 v[%d:%d], v%d, s[%d:%d], s%d offen sc1" % (DD, DD + 3, vK, srdWS, srdWS + 3, sDST)], [DD + 1, DD + 3])
        self.stamp(10)
        self.cross16([DD, DD + 2], [DD + 4, DD + 5], "v_add_f32"); self.cross32([DD, DD + 2], [DD + 4, DD + 5], "v_add_f32")
        self("v_mov_b32 v%d, v%d\ns_lshl_b32 s%d, s%d, 7\ns_add_u32 s%d, s%d, %d\nv_lshl_add_u32 v%d, v%d, 3, s%d" % (DD + 1, DD + 2, sA, sWAVE, sA, sA, RS, vF, vLANE, sA))
        self.execm(0xFFFF)
        self("ds_write_b64 v%d, v[%d:%d]" % (vF, DD, DD + 1))
        self.execm(-1)
        self("s_waitcnt lgkmcnt(0)\ns_barrier")
        l = self.nl("L_nofin")
        self("s_cmp_lg_u32 s%d, 0\ns_cbranch_scc1 %s" % (sWAVE, l))
        self("v_and_b32 v%d, 31, v%d\nv_lshlrev_b32 v%d, 2, v%d\nv_add_u32 v%d, %d, v%d" % (vF, vLANE, vF, vF, vF, RS, vF))
        for w in range(16): self("ds_read_b32 v%d, v%d offset:%d" % (DD + w, vF, w * 128))
        self("s_waitcnt lgkmcnt(0)")
        for w in range(7): self("ds_read_b32 v%d, v%d offset:%d" % (DD + 16 + w, vF, 2048 + w * 128))
        for st in (8, 4, 2, 1):
            for k in range(st): self("v_add_f32 v%d, v%d, v%d" % (DD + k, DD + k, DD + k + st))
        self("s_waitcnt lgkmcnt(0)")
        F = DD + 16
        self("v_add_f32 v%d, v%d, v%d\nv_add_f32 v%d, v%d, v%d\nv_add_f32 v%d, v%d, v%d\nv_add_f32 v%d, v%d, v%d\nv_add_f32 v%d, v%d, v%d\nv_add_f32 v%d, v%d, v%d"
             % (F, F, F + 1, F + 2, F + 2, F + 3, F + 4, F + 4, F + 5, F, F, F + 2, F + 4, F + 4, F + 6, F, F, F + 4))
        self.bf16r(DD, DD); self.bf16r(F, F)
        self("v_mul_f32 v%d, 0x%x, v%d\nv_exp_f32 v%d, v%d\nv_add_f32 v%d, 1.0, v%d\nv_rcp_f32 v%d, v%d\nv_mul_f32 v%d, v%d, v%d" % (F + 1, f2u(-LOG2E), F, F + 1, F + 1, F + 1, F + 1, F + 1, F + 1, F, F, F + 1))
        self.bf16r(F, F)
        self("v_mul_f32 v%d, v%d, v%d" % (DD, DD, F))
        self.bf16r(DD, DD)
        self("s_waitcnt vmcnt(0)")
        self("v_lshlrev_b32 v%d, 16, v%d\nv_add_f32 v%d, v%d, v%d\nv_cvt_pk_bf16_f32 v%d, v%d, v%d" % (XV, XV, DD, DD, XV, DD, DD, DD))
        self.execm(0xFFFFFFFF)
        self("buffer_store_short v%d, v%d, s[%d:%d], 0 offen" % (DD, VO, srdOUT, srdOUT + 3))
        self.execm(-1)
        l2 = self.nl("L_noep")
        self("s_cmp_lg_u32 s%d, 0\ns_cbranch_scc1 %s" % (sIDX, l2))
        self("v_mov_b32 v%d, s%d\nv_mov_b32 v%d, 0" % (vF, sTAG, vG))
        self.execm(1)
        self("buffer_store_dword v%d, v%d, s[%d:%d], 0 offen sc1" % (vF, vG, srdWS, srdWS + 3))
        self.execm(-1)
        self.lab(l2)
        self.lab(l)
        self.finish("R")
    def role_N(self):
        self.lab("R_N")
        self.code_prefetch("N")
        self.issue_K(); self.issue_V()
        self.stamp(2)
        self.tag_ready()
        self.att_q(); self.att_qk(8); self.att_pv(0)
        self.finish("N")

def gen(**opt):
    g = G(opt)
    g.prologue()
    g.role_N(); g.role_R(); g.role_WO(); g.role_D(); g.role_QGU()
    g.lab("L_exit")
    g("s_endpgm")
    lines = hazard.resolve(g.a.lines)
    body = "\n".join(lines) + "\n"
    return wrap(body, (256, 1, 1), (1024, 1, 1), LDS_BYTES, vgpr=128)
if __name__ == "__main__":
    import argparse
    p = argparse.ArgumentParser()
    p.add_argument("-o", default="recurrent_scan__sliding_block_cached__glu_gated_bilinear__decode.s")
    p.add_argument("--stamps", type=int, default=0)
    x = p.parse_args()
    open(x.o, "w").write(gen(stamps=x.stamps))
    print("written", x.o)
```

```python
import sys
from asmlib import *
import hazard

EPOCH = 0
QB = 4096
GB = 36864
UB = 51200
ML = 65536
FB = 73728
SB = 274432
OB = 1048576
DBGA = 4 << 20
STAMPA = 8 << 20
QS = 131072; PS = 132096; MX = 133120; LS = 133248; GU = 133376; OA = 133888
RS = 134400; RSF = RS + 2048; RED = 138496
LDS_BYTES = 163840
LOG2E = 1.4426950408889634
import struct
def f2u(x): return struct.unpack("<I", struct.pack("<f", x))[0]
C_EXP = f2u(LOG2E / 16.0)

sWAVE = 3
sX, sK, sV, sWQ, sWO, sBX, sGATE, sUP = 4, 6, 8, 10, 12, 14, 16, 18
sDOWN, sOUT, sDBG, sWS = 20, 22, 24, 26
srdK, srdV, srdW, srdWS, srdX = 28, 32, 36, 40, 44
srdOUT = 48
sTAG = 52; sHKV = 53; sB = 54; sSPLIT = 55; sD = 56
sT0, sT1, sKV, sSTR, sDEST, sCNT, sT2, sT3 = 57, 58 + 0, 59, 60, 61, 62, 63, 96
sA = 57; sBt = 58; sKVOFF = 59; sSTRIDE = 60; sDST = 61; sLOOP = 62; sC = 63
sP0 = 64
sSELLO = 96; sSELHI = 97; sM0 = 98
sIDX = 100; sDOFF = 101
vLANE = 1; vK = 2; vV0 = 3
vA = 7; vB = 8; vC = 9; vDo = 10; vE = 11; vF = 12; vG = 13; vH = 14; vI = 15
KR = 16
RAW = 48
BF = 64
DD = 80
ACC = 112
GR = 116
vJ = 120
vST = 127
AF = 124

class G:
    def __init__(self, opt):
        self.a = Asm(); self.opt = opt; self.nst = 0
    def __call__(self, s): self.a(s)
    def lab(self, n): self.a.label(n)
    def nl(self, p): return self.a.newlabel(p)
    def stamp(self, k):
        if not self.opt.get("stamps"): return
        a = self.a
        l = self.nl("L_st")
        a("s_cmp_lg_u32 s%d, 0\ns_cbranch_scc1 %s" % (sWAVE, l))
        a("s_memtime s[%d:%d]\ns_waitcnt lgkmcnt(0)\nv_writelane_b32 v%d, s%d, %d" % (sM0, sM0 + 1, vST, sM0, k))
        self.lab(l)
    def srd(self, d, p, size):
        self("s_mov_b32 s%d, s%d\ns_mov_b32 s%d, s%d\ns_mov_b32 s%d, 0x%x\ns_mov_b32 s%d, 0x20000" % (d, p, d + 1, p + 1, d + 2, size, d + 3))
    def execm(self, mask):
        if mask == -1: self("s_mov_b64 exec, -1")
        elif mask <= 64: self("s_mov_b64 exec, %d" % mask)
        elif mask < (1 << 32):
            self("s_mov_b32 exec_lo, 0x%x\ns_mov_b32 exec_hi, 0" % mask)
        else:
            self("s_mov_b32 exec_lo, 0x%x\ns_mov_b32 exec_hi, 0x%x" % (mask & 0xffffffff, mask >> 32))
    def smask(self, s, mask):
        self("s_mov_b32 s%d, 0x%x\ns_mov_b32 s%d, 0x%x" % (s, mask & 0xffffffff, s + 1, mask >> 32))
    DPPALL = "row_mask:0xf bank_mask:0xf"
    def row_allreduce(self, regs, op, steps=(8, 4, 2, 1)):
        for st in steps:
            for r in regs:
                self("%s_dpp v%d, v%d, v%d row_ror:%d %s" % (op, r, r, r, st, self.DPPALL))
    def cross16(self, regs, tmps, op):
        for r, t in zip(regs, tmps): self("v_mov_b32 v%d, v%d" % (t, r))
        for r, t in zip(regs, tmps): self("v_permlane16_swap_b32 v%d, v%d" % (r, t))
        for r, t in zip(regs, tmps): self("%s v%d, v%d, v%d" % (op, r, r, t))
    def cross32(self, regs, tmps, op):
        for r, t in zip(regs, tmps): self("v_mov_b32 v%d, v%d" % (t, r))
        for r, t in zip(regs, tmps): self("v_permlane32_swap_b32 v%d, v%d" % (r, t))
        for r, t in zip(regs, tmps): self("%s v%d, v%d, v%d" % (op, r, r, t))
    def bf16r(self, d, s):
        self("v_cvt_pk_bf16_f32 v%d, v%d, v%d\nv_lshlrev_b32 v%d, 16, v%d" % (d, s, s, d, d))

    def code_prefetch(self, role):
        self("s_getpc_b64 s[%d:%d]" % (sM0, sM0 + 1))
        self.lab("L_pc_%s" % role)
        self("s_lshl_b32 s%d, s%d, 10" % (sA, sWAVE))
        self("v_lshl_add_u32 v%d, v%d, 4, s%d" % (vA, vLANE, sA))
        self("v_min_u32 v%d, L_end_%s-L_pc_%s-16, v%d" % (vA, role, role, vA))
        self("global_load_dwordx4 v[%d:%d], v%d, s[%d:%d]" % (vJ, vJ + 3, vA, sM0, sM0 + 1))
    def issue_K(self, lo=0, hi=8):
        for i in range(lo, hi):
            if i % 4 == 0 or i == lo: self("s_add_u32 s%d, s%d, %d" % (sA, sKVOFF, (i // 4) * 4096))
            self("buffer_load_dwordx4 v[%d:%d], v%d, s[%d:%d], s%d offen offset:%d nt" % (KR + 4 * i, KR + 4 * i + 3, vK, srdK, srdK + 3, sA, (i % 4) * 1024))
    def issue_V(self):
        if self.opt.get("prio", 1): self("s_setprio 0")
        for i in range(8):
            if i % 4 == 0:
                self("s_lshl_b32 s%d, s%d, 13\ns_add_u32 m0, s%d, %d\ns_add_u32 s%d, s%d, %d" % (sBt, sWAVE, sBt, i * 1024, sA, sKVOFF, i * 1024))
            self("buffer_load_dwordx4 v%d, s[%d:%d], s%d offen offset:%d nt lds" % (vV0 + (i % 4), srdV, srdV + 3, sA, (i % 4) * 1024))
    def issue_duty(self, stride_imm=None):
        if stride_imm is not None:
            for i in range(4):
                self("buffer_load_dwordx4 v[%d:%d], v%d, s[%d:%d], s%d offen offset:%d nt" % (RAW + 4 * i, RAW + 4 * i + 3, vDo, srdW, srdW + 3, sDOFF, i * stride_imm))
        else:
            self("s_mov_b32 s%d, s%d" % (sA, sDOFF))
            for i in range(4):
                self("buffer_load_dwordx4 v[%d:%d], v%d, s[%d:%d], s%d offen nt" % (RAW + 4 * i, RAW + 4 * i + 3, vDo, srdW, srdW + 3, sA))
                if i < 3: self("s_add_u32 s%d, s%d, s%d" % (sA, sA, sSTRIDE))
    def duty_perm(self):
        self("s_mov_b32 s%d, 0x05040100\ns_mov_b32 s%d, 0x07060302" % (sSELLO, sSELHI))
        for e in range(8):
            sel = sSELHI if e & 1 else sSELLO
            self("v_perm_b32 v%d, v%d, v%d, s%d" % (BF + 2 * e, RAW + 4 + (e >> 1), RAW + (e >> 1), sel))
            self("v_perm_b32 v%d, v%d, v%d, s%d" % (BF + 2 * e + 1, RAW + 12 + (e >> 1), RAW + 8 + (e >> 1), sel))
    def duty_mfma_post(self, vaddr, boff):
        for e in range(8):
            self("v_mfma_f32_16x16x16_bf16 v[%d:%d], v[%d:%d], v[%d:%d], 0" % (DD + 4 * e, DD + 4 * e + 3, AF, AF + 1, BF + 2 * e, BF + 2 * e + 1))
        for e in range(8):
            for b in range(2):
                self("v_add_f32_dpp v%d, v%d, v%d row_ror:8 %s" % (RAW + 8 * b + e, DD + 4 * e + 2 * b + 1, DD + 4 * e + 2 * b, self.DPPALL))
        self.execm(0xff)
        for b in range(2):
            for hh in range(2):
                self("ds_write_b128 v%d, v[%d:%d] offset:%d" % (vaddr, RAW + 8 * b + 4 * hh, RAW + 8 * b + 4 * hh + 3, b * boff + hh * 16))
        self.execm(-1)
    def poll_scalar(self, nbuf, name):
        lp = self.nl("L_ps"); dn = self.nl("L_pd")
        self("s_mov_b32 s%d, %d" % (sLOOP, self.opt.get("maxpoll", 20000)))
        self.lab(lp)
        for k in range(nbuf):
            self("s_load_dwordx16 s[%d:%d], s[%d:%d], s%d offset:%d glc" % (sP0 + 16 * k, sP0 + 16 * k + 15, sWS, sWS + 1, sA, 64 * k))
        self("s_waitcnt lgkmcnt(0)")
        tags = [sP0 + 1 + 2 * i for i in range(8 * nbuf)]
        self("s_and_b32 s%d, s%d, s%d\ns_or_b32 s%d, s%d, s%d" % (sBt, tags[0], tags[1], sC, tags[0], tags[1]))
        for t in tags[2:]:
            self("s_and_b32 s%d, s%d, s%d\ns_or_b32 s%d, s%d, s%d" % (sBt, sBt, t, sC, sC, t))
        self("s_xor_b32 s%d, s%d, s%d\ns_xor_b32 s%d, s%d, s%d\ns_or_b32 s%d, s%d, s%d" % (sBt, sBt, sTAG, sC, sC, sTAG, sBt, sBt, sC))
        self("s_cbranch_scc0 %s" % dn)
        self("s_sleep %d" % self.opt.get("sleep", 2))
        self("s_sub_u32 s%d, s%d, 1\ns_cmp_lg_u32 s%d, 0\ns_cbranch_scc1 %s" % (sLOOP, sLOOP, sLOOP, lp))
        self.lab(dn)
    def scalars_to_lds(self, n, vaddr):
        for i in range(n):
            self("v_writelane_b32 v%d, s%d, %d" % (vE, sP0 + 2 * i, i))
        self.execm((1 << n) - 1)
        self("ds_write_b32 v%d, v%d" % (vaddr, vE))
        self.execm(-1)
    def poll_vector(self, loads, tagregs):
        lp = self.nl("L_pv"); dn = self.nl("L_pvd")
        self("s_mov_b32 s%d, %d" % (sLOOP, self.opt.get("maxpoll", 20000)))
        self.lab(lp)
        for l in loads: self(l)
        self("s_waitcnt vmcnt(0)")
        self("v_xor_b32 v%d, s%d, v%d" % (vI, sTAG, tagregs[0]))
        for t in tagregs[1:]:
            self("v_xor_b32 v%d, s%d, v%d\nv_or_b32 v%d, v%d, v%d" % (vH, sTAG, t, vI, vI, vH))
        self("v_cmp_ne_u32 vcc, 0, v%d" % vI)
        self("s_cbranch_vccz %s" % dn)
        self("s_sub_u32 s%d, s%d, 1\ns_cmp_lg_u32 s%d, 0\ns_cbranch_scc1 %s" % (sLOOP, sLOOP, sLOOP, lp))
        self.lab(dn)

    def att_q(self):
        self("s_lshl_b32 s%d, s%d, 3\ns_lshr_b32 s%d, s%d, 1\ns_add_u32 s%d, s%d, s%d\ns_lshl_b32 s%d, s%d, 9" % (sA, sHKV, sBt, sWAVE, sA, sA, sBt, sA, sA))
        self("s_lshl_b32 s%d, s%d, 8\ns_add_u32 s%d, s%d, s%d" % (sBt, sB, sA, sA, sBt))
        self("s_and_b32 s%d, s%d, 1\ns_lshl_b32 s%d, s%d, 7\ns_add_u32 s%d, s%d, s%d\ns_add_u32 s%d, s%d, %d" % (sBt, sWAVE, sBt, sBt, sA, sA, sBt, sA, sA, QB))
        self("s_lshl_b32 s%d, s%d, 6\ns_add_u32 s%d, s%d, %d" % (sDST, sWAVE, sDST, sDST, QS))
        self("v_lshl_add_u32 v%d, v%d, 2, s%d" % (vF, vLANE, sDST))
        self.poll_scalar(2, "q")
        self.stamp(3)
        self.scalars_to_lds(16, vF)
        self("s_waitcnt lgkmcnt(0)\ns_barrier")
        QH = DD + 16
        self("v_and_b32 v%d, 31, v%d\nv_lshlrev_b32 v%d, 4, v%d\nv_add_u32 v%d, %d, v%d" % (vF, vLANE, vF, vF, vF, QS, vF))
        self("ds_read_b128 v[%d:%d], v%d\nds_read_b128 v[%d:%d], v%d offset:512" % (QH, QH + 3, vF, QH + 4, QH + 7, vF))
    def att_qk(self, kwait):
        QH = DD + 16; AC = DD
        self("s_waitcnt vmcnt(%d) lgkmcnt(0)" % kwait)
        self.stamp(4)
        for e in range(4):
            for i in range(8):
                for h in range(2):
                    if e == 0: self("v_dot2_f32_bf16 v%d, v%d, v%d, 0" % (AC + 2 * i + h, KR + 4 * i + e, QH + 4 * h + e))
                    else: self("v_dot2c_f32_bf16 v%d, v%d, v%d" % (AC + 2 * i + h, KR + 4 * i + e, QH + 4 * h + e))
        acc = lambda i, h: AC + 2 * i + h
        for i in range(4):
            for h in range(2): self("v_permlane16_swap_b32 v%d, v%d" % (acc(i, h), acc(i + 4, h)))
        for i in range(4):
            for h in range(2): self("v_add_f32 v%d, v%d, v%d" % (acc(i, h), acc(i, h), acc(i + 4, h)))
        for i in range(2):
            for h in range(2): self("v_add_f32_dpp v%d, v%d, v%d row_ror:8 row_mask:0xf bank_mask:0x3" % (acc(i, h), acc(i, h), acc(i, h)))
        for i in range(2):
            for h in range(2): self("v_add_f32_dpp v%d, v%d, v%d row_ror:8 row_mask:0xf bank_mask:0xc" % (acc(i, h), acc(i + 2, h), acc(i + 2, h)))
        for h in range(2): self("v_add_f32_dpp v%d, v%d, v%d row_half_mirror row_mask:0xf bank_mask:0x5" % (acc(0, h), acc(0, h), acc(0, h)))
        for h in range(2): self("v_add_f32_dpp v%d, v%d, v%d row_half_mirror row_mask:0xf bank_mask:0xa" % (acc(0, h), acc(1, h), acc(1, h)))
        for qp in ("[1,0,3,2]", "[2,3,0,1]"):
            for h in range(2): self("v_add_f32_dpp v%d, v%d, v%d quad_perm:%s %s" % (acc(0, h), acc(0, h), acc(0, h), qp, self.DPPALL))
        F0, F1 = AC, AC + 1
        self("v_cvt_pk_bf16_f32 v%d, v%d, v%d" % (AC + 2, F0, F1))
        self("v_lshlrev_b32 v%d, 16, v%d\nv_and_b32 v%d, 0xffff0000, v%d" % (F0, AC + 2, F1, AC + 2))
        M0, M1 = AC + 4, AC + 5
        self("v_max_f32_dpp v%d, v%d, v%d row_ror:4 %s\nv_max_f32_dpp v%d, v%d, v%d row_ror:4 %s" % (M0, F0, F0, self.DPPALL, M1, F1, F1, self.DPPALL))
        self.row_allreduce([M0, M1], "v_max_f32", (8,))
        self.cross16([M0, M1], [AC + 6, AC + 7], "v_max_f32")
        self.cross32([M0, M1], [AC + 6, AC + 7], "v_max_f32")
        self("s_lshl_b32 s%d, s%d, 3\ns_add_u32 s%d, s%d, %d\nv_mov_b32 v%d, s%d" % (sA, sWAVE, sA, sA, MX, vF, sA))
        self.execm(1)
        self("ds_write_b64 v%d, v[%d:%d]" % (vF, M0, M1))
        self.execm(-1)
        self("s_waitcnt lgkmcnt(0)\ns_barrier")
        self("v_and_b32 v%d, 15, v%d\nv_lshlrev_b32 v%d, 3, v%d\nv_add_u32 v%d, %d, v%d" % (vG, vLANE, vG, vG, vG, MX, vG))
        self("ds_read_b64 v[%d:%d], v%d\ns_waitcnt lgkmcnt(0)" % (M0, M1, vG))
        self.row_allreduce([M0, M1], "v_max_f32")
        P0, P1 = AC + 8, AC + 9
        self("v_sub_f32 v%d, v%d, v%d\nv_sub_f32 v%d, v%d, v%d" % (P0, F0, M0, P1, F1, M1))
        self("v_mul_f32 v%d, 0x%x, v%d\nv_mul_f32 v%d, 0x%x, v%d" % (P0, C_EXP, P0, P1, C_EXP, P1))
        self("v_exp_f32 v%d, v%d\nv_exp_f32 v%d, v%d" % (P0, P0, P1, P1))
        PK = AC + 10
        self("v_cvt_pk_bf16_f32 v%d, v%d, v%d" % (PK, P0, P1))
        self("s_lshr_b32 s%d, s%d, 1\ns_lshl_b32 s%d, s%d, 6\ns_and_b32 s%d, s%d, 1\ns_lshl_b32 s%d, s%d, 3\ns_add_u32 s%d, s%d, s%d\ns_add_u32 s%d, s%d, %d"
             % (sA, sWAVE, sA, sA, sBt, sWAVE, sBt, sBt, sA, sA, sBt, sA, sA, PS))
        self("v_bfe_u32 v%d, v%d, 3, 2\nv_lshlrev_b32 v%d, 4, v%d" % (vG, vLANE, vG, vG))
        self("v_bfe_u32 v%d, v%d, 2, 1\nv_lshl_add_u32 v%d, v%d, 2, v%d" % (vH, vLANE, vG, vH, vG))
        self("v_lshrrev_b32 v%d, 5, v%d\nv_lshl_add_u32 v%d, v%d, 1, v%d\nv_add_u32 v%d, s%d, v%d" % (vH, vLANE, vG, vH, vG, vG, sA, vG))
        S0, S1 = AC + 12, AC + 13
        self("v_add_f32_dpp v%d, v%d, v%d row_ror:4 %s\nv_add_f32_dpp v%d, v%d, v%d row_ror:4 %s" % (S0, P0, P0, self.DPPALL, S1, P1, P1, self.DPPALL))
        self.execm(0x1111111111111111)
        self("ds_write_b16 v%d, v%d\nds_write_b16_d16_hi v%d, v%d offset:512" % (vG, PK, vG, PK))
        self.execm(-1)
        self.row_allreduce([S0, S1], "v_add_f32", (8,))
        self.cross16([S0, S1], [AC + 6, AC + 7], "v_add_f32")
        self.cross32([S0, S1], [AC + 6, AC + 7], "v_add_f32")
        self.execm(1)
        self("ds_write_b64 v%d, v[%d:%d] offset:%d" % (vF, S0, S1, LS - MX))
        self.execm(-1)
        self("s_waitcnt lgkmcnt(0)\ns_barrier")
        self("v_and_b32 v%d, 1, v%d\nv_lshlrev_b32 v%d, 9, v%d\nv_lshrrev_b32 v%d, 4, v%d\nv_lshl_add_u32 v%d, v%d, 4, v%d\nv_add_u32 v%d, %d, v%d"
             % (vG, vLANE, vG, vG, vH, vLANE, vG, vH, vG, vG, PS, vG))
        for T in range(8):
            self("ds_read_b128 v[%d:%d], v%d offset:%d" % (KR + 4 * T, KR + 4 * T + 3, vG, T * 64))
        l = self.nl("L_noml")
        self("s_cmp_lg_u32 s%d, 0\ns_cbranch_scc1 %s" % (sWAVE, l))
        self("v_and_b32 v%d, 15, v%d\nv_lshlrev_b32 v%d, 3, v%d\nv_bfe_u32 v%d, v%d, 4, 1\nv_lshl_add_u32 v%d, v%d, 2, v%d\nv_add_u32 v%d, %d, v%d"
             % (vG, vLANE, vG, vG, vH, vLANE, vG, vH, vG, vG, LS, vG))
        self("ds_read_b32 v%d, v%d" % (GR + 2, vG))
        self.smask(sM0, 0xFFFF0000)
        self("v_cndmask_b32 v%d, v%d, v%d, s[%d:%d]" % (GR, M0, M1, sM0, sM0 + 1))
        self("v_mov_b32 v%d, s%d\nv_mov_b32 v%d, s%d" % (GR + 1, sTAG, GR + 3, sTAG))
        self("v_lshlrev_b32 v%d, 8, v%d" % (vH, vH))
        self("s_lshl_b32 s%d, s%d, 4\ns_lshl_b32 s%d, s%d, 1\ns_add_u32 s%d, s%d, s%d\ns_lshl_b32 s%d, s%d, 4\ns_add_u32 s%d, s%d, s%d\ns_lshl_b32 s%d, s%d, 4\ns_add_u32 s%d, s%d, %d"
             % (sA, sB, sBt, sHKV, sA, sA, sBt, sA, sA, sA, sA, sSPLIT, sA, sA, sA, sA, ML))
        self("s_waitcnt lgkmcnt(0)")
        self.row_allreduce([GR + 2], "v_add_f32")
        self.execm(0x10001)
        self("buffer_store_dwordx4 v[%d:%d], v%d, s[%d:%d], s%d offen sc1" % (GR, GR + 3, vH, srdWS, srdWS + 3, sA))
        self.execm(-1)
        self.lab(l)
        self.stamp(5)
    def att_pv(self, vwait):
        VB = DD
        self("v_lshrrev_b32 v%d, 2, v%d\nv_and_b32 v%d, 7, v%d\nv_xor_b32 v%d, s%d, v%d\nv_lshlrev_b32 v%d, 5, v%d" % (vF, vLANE, vG, vF, vG, sWAVE, vG, vG, vG))
        self("v_lshl_add_u32 v%d, v%d, 9, v%d\nv_and_b32 v%d, 3, v%d\nv_lshl_add_u32 v%d, v%d, 3, v%d\nv_add_u32 v%d, 0x10000, v%d" % (vF, vF, vG, vG, vLANE, vF, vG, vF, vG, vF))
        self("v_lshrrev_b32 v%d, 4, v%d\nv_lshlrev_b32 v%d, 16, v%d\nv_and_b32 v%d, 15, v%d\nv_lshl_add_u32 v%d, v%d, 3, v%d" % (vH, vLANE, vH, vH, vI, vLANE, vH, vI, vH))
        self("s_lshl_b32 s%d, s%d, 3\ns_lshr_b32 s%d, s%d, 2\ns_add_u32 s%d, s%d, s%d\ns_lshl_b32 s%d, s%d, 14" % (sA, sHKV, sBt, sWAVE, sA, sA, sBt, sA, sA))
        self("s_lshl_b32 s%d, s%d, 13\ns_add_u32 s%d, s%d, s%d\ns_lshl_b32 s%d, s%d, 9\ns_add_u32 s%d, s%d, s%d" % (sBt, sB, sA, sA, sBt, sBt, sSPLIT, sA, sA, sBt))
        self("s_and_b32 s%d, s%d, 3\ns_lshl_b32 s%d, s%d, 7\ns_add_u32 s%d, s%d, s%d\ns_add_u32 s%d, s%d, %d" % (sBt, sWAVE, sBt, sBt, sA, sA, sBt, sDST, sA, OB))
        self("v_mov_b32 v%d, s%d" % (GR + 1, sTAG))
        self("s_waitcnt vmcnt(%d) lgkmcnt(0)\ns_barrier" % vwait)
        self.stamp(6)
        for T in range(8):
            base = vF if T < 4 else vG
            o = (T % 4) * 16384
            self("ds_read_b64_tr_b16 v[%d:%d], v%d offset:%d" % (VB + 4 * T, VB + 4 * T + 1, base, o))
            self("ds_read_b64_tr_b16 v[%d:%d], v%d offset:%d" % (VB + 4 * T + 2, VB + 4 * T + 3, base, o + 8192))
        for T in range(8):
            self("s_waitcnt lgkmcnt(%d)" % (14 - 2 * T))
            self("v_mfma_f32_16x16x32_bf16 v[%d:%d], v[%d:%d], v[%d:%d], %s" % (ACC, ACC + 3, KR + 4 * T, KR + 4 * T + 3, VB + 4 * T, VB + 4 * T + 3, "0" if T == 0 else "v[%d:%d]" % (ACC, ACC + 3)))
        self("v_permlane16_swap_b32 v%d, v%d" % (ACC, ACC + 1))
        self("v_mov_b32 v%d, v%d" % (GR, ACC))
        self.execm(0xFFFFFFFF)
        self("buffer_store_dwordx2 v[%d:%d], v%d, s[%d:%d], s%d offen sc1" % (GR, GR + 1, vH, srdWS, srdWS + 3, sDST))
        self.execm(-1)
        self.stamp(7)
    def duty_lane_addr(self, stride_sgpr=None, stride_imm=None):
        self("v_lshrrev_b32 v%d, 3, v%d\nv_and_b32 v%d, 7, v%d\nv_lshlrev_b32 v%d, 4, v%d" % (vA, vLANE, vDo, vLANE, vDo, vDo))
        if stride_imm is not None:
            self("v_mul_u32_u24 v%d, %d, v%d\nv_add_u32 v%d, v%d, v%d" % (vA, 4 * stride_imm, vA, vDo, vDo, vA))
        else:
            self("s_lshl_b32 s%d, s%d, 2\nv_mul_u32_u24 v%d, s%d, v%d\nv_add_u32 v%d, v%d, v%d" % (sA, stride_sgpr, vA, sA, vA, vDo, vDo, vA))
    def rowblock_setup(self):
        self("s_cmp_ge_u32 s%d, 7\ns_cselect_b32 s%d, 1, 0\ns_cmp_ge_u32 s%d, 14\ns_cselect_b32 s%d, 2, s%d" % (sWAVE, sC, sWAVE, sC, sC))
        self("s_mul_i32 s%d, s%d, 7\ns_sub_u32 s%d, s%d, s%d" % (sA, sC, sSTRIDE, sWAVE, sA))
        self("s_mul_i32 s%d, s%d, 57344\ns_mul_i32 s%d, s%d, %d\ns_add_u32 s%d, s%d, s%d\ns_lshl_b32 s%d, s%d, 7\ns_add_u32 s%d, s%d, s%d"
             % (sDOFF, sIDX, sA, sC, 32 * 896, sDOFF, sDOFF, sA, sA, sSTRIDE, sDOFF, sDOFF, sA))
        self("s_cmp_ge_u32 s%d, 14\ns_cselect_b32 s%d, 0x40000000, s%d" % (sWAVE, sDOFF, sDOFF))
        self("s_mov_b32 s48, s%d\ns_mov_b32 s49, s%d" % (sC, sSTRIDE))
        self.duty_lane_addr(stride_imm=896)
    def rowblock_redaddr(self, v):
        self("s_mul_i32 s%d, s48, 3584\ns_lshl_b32 s%d, s49, 8\ns_add_u32 s%d, s%d, s%d\ns_add_u32 s%d, s%d, %d" % (sA, sBt, sA, sA, sBt, sA, sA, RED))
        self("v_lshl_add_u32 v%d, v%d, 5, s%d" % (v, vLANE, sA))
    def afrag_elem_off(self, v, t, rowsgpr):
        self("v_bfe_u32 v%d, v%d, 1, 1\nv_lshlrev_b32 v%d, 7, v%d\nv_lshrrev_b32 v%d, 4, v%d\nv_lshl_add_u32 v%d, v%d, 4, v%d" % (v, vLANE, v, v, t, vLANE, v, t, v))
        self("v_and_b32 v%d, 1, v%d\nv_lshl_add_u32 v%d, v%d, 3, v%d\ns_lshl_b32 s%d, s%d, 6\nv_add_u32 v%d, s%d, v%d" % (t, vLANE, v, t, v, sA, rowsgpr, v, sA, v))
    def publish448(self, base, strideR):
        l = self.nl("L_nopub")
        self("s_cmp_ge_u32 s%d, 7\ns_cbranch_scc1 %s" % (sWAVE, l))
        self("v_lshrrev_b32 v%d, 4, v%d\ns_lshl_b32 s%d, s%d, 2\nv_add_u32 v%d, s%d, v%d" % (vF, vLANE, sA, sWAVE, vF, sA, vF))
        self("v_bfe_u32 v%d, v%d, 3, 1\nv_mul_u32_u24 v%d, 1792, v%d" % (vG, vLANE, vG, vG))
        self("v_lshl_add_u32 v%d, v%d, 6, v%d\nv_and_b32 v%d, 7, v%d\nv_lshl_add_u32 v%d, v%d, 3, v%d\nv_add_u32 v%d, %d, v%d" % (vG, vF, vG, vH, vLANE, vG, vH, vG, vG, RED, vG))
        self("ds_read_b64 v[%d:%d], v%d\nds_read_b64 v[%d:%d], v%d offset:3584" % (DD, DD + 1, vG, DD + 2, DD + 3, vG))
        self("v_mul_u32_u24 v%d, %d, v%d\nv_and_b32 v%d, 15, v%d\nv_lshl_add_u32 v%d, v%d, 4, v%d" % (vF, strideR, vF, vH, vLANE, vF, vH, vF))
        self("s_lshl_b32 s%d, s%d, 8\ns_add_u32 s%d, s%d, %d" % (sA, sIDX, sA, sA, base))
        self("v_mov_b32 v%d, s%d\nv_mov_b32 v%d, s%d" % (GR + 1, sTAG, GR + 3, sTAG))
        self("s_waitcnt lgkmcnt(0)")
        self("v_add_f32 v%d, v%d, v%d\nv_add_f32 v%d, v%d, v%d" % (GR, DD, DD + 2, GR + 2, DD + 1, DD + 3))
        self("buffer_store_dwordx4 v[%d:%d], v%d, s[%d:%d], s%d offen sc1" % (GR, GR + 3, vF, srdWS, srdWS + 3, sA))
        self.lab(l)
    def finish(self, role):
        if self.opt.get("stamps"):
            l = self.nl("L_nost")
            self("s_cmp_lg_u32 s%d, 0\ns_cbranch_scc1 %s" % (sWAVE, l))
            self.stamp(15)
            self("s_lshl_b32 s%d, s2, 8\ns_add_u32 s%d, s%d, %d" % (sA, sA, sA, STAMPA))
            self("v_lshlrev_b32 v%d, 2, v%d" % (vF, vLANE))
            self("buffer_store_dword v%d, v%d, s[%d:%d], s%d offen" % (vST, vF, srdWS, srdWS + 3, sA))
            self.lab(l)
        self("s_endpgm")
        self.lab("L_end_%s" % role)

    def prologue(self):
        self("s_cmp_ge_u32 s2, 256\ns_cbranch_scc1 L_exit")
        if self.opt.get("prio", 1): self("s_setprio 3")
        self("s_load_dwordx16 s[4:19], s[0:1], 0\ns_load_dwordx8 s[20:27], s[0:1], 64")
        self("v_and_b32 v%d, 63, v0\nv_lshrrev_b32 v%d, 6, v0" % (vLANE, vA))
        self("s_and_b32 s%d, s2, 7\ns_lshr_b32 s%d, s2, 3" % (sHKV, sD))
        self("v_readfirstlane_b32 s%d, v%d" % (sWAVE, vA))
        self("s_and_b32 s%d, s%d, 1\ns_lshr_b32 s%d, s%d, 1" % (sB, sD, sSPLIT, sD))
        self("s_lshl_b32 s%d, s%d, 3\ns_add_u32 s%d, s%d, s%d\ns_lshl_b32 s%d, s%d, 15\ns_add_u32 s%d, s%d, 28672" % (sA, sB, sA, sA, sHKV, sA, sA, sA, sA))
        self("s_lshl_b32 s%d, s%d, 8\ns_add_u32 s%d, s%d, s%d\ns_lshl_b32 s%d, s%d, 4\ns_add_u32 s%d, s%d, s%d\ns_lshl_b32 s%d, s%d, 9" % (sBt, sSPLIT, sA, sA, sBt, sBt, sWAVE, sA, sA, sBt, sKVOFF, sA))
        self("v_lshlrev_b32 v%d, 4, v%d" % (vK, vLANE))
        self("v_lshrrev_b32 v%d, 5, v%d\nv_and_b32 v%d, 31, v%d\nv_lshlrev_b32 v%d, 1, v%d\nv_xor_b32 v%d, v%d, v%d" % (vA, vLANE, vB, vLANE, vC, vA, vB, vB, vC))
        self("v_lshlrev_b32 v%d, 4, v%d\nv_lshl_add_u32 v%d, v%d, 9, v%d" % (vB, vB, vV0, vA, vB))
        self("v_xor_b32 v%d, 64, v%d\nv_xor_b32 v%d, 0x80, v%d\nv_xor_b32 v%d, 0xc0, v%d" % (vV0 + 1, vV0, vV0 + 2, vV0, vV0 + 3, vV0))
        if self.opt.get("stamps"):
            self("v_mov_b32 v%d, 0" % vST)
        self("s_sub_u32 s%d, s%d, 8\ns_lshl_b32 s%d, s%d, 3\ns_add_u32 s%d, s%d, s%d" % (sIDX, sD, sIDX, sIDX, sIDX, sIDX, sHKV))
        self("s_waitcnt lgkmcnt(0)")
        self("s_load_dword s%d, s[%d:%d], 0" % (sTAG, sWS, sWS + 1))
        if self.opt.get("stamps"):
            l = self.nl("L_st0")
            self("s_cmp_lg_u32 s%d, 0\ns_cbranch_scc1 %s" % (sWAVE, l))
            self("s_memrealtime s[%d:%d]\ns_waitcnt lgkmcnt(0)\nv_writelane_b32 v%d, s%d, 0" % (sM0, sM0 + 1, vST, sM0))
            self.lab(l)
            self.stamp(1)
        self.srd(srdK, sK, 0x10000000); self.srd(srdV, sV, 0x10000000); self.srd(srdWS, sWS, 0x40000000)
        self("s_cmp_lt_u32 s%d, 8\ns_cbranch_scc1 R_Q" % sD)
        self("s_cmp_lt_u32 s%d, 56\ns_cbranch_scc1 R_GU" % sIDX)
        self("s_cmp_lt_u32 s%d, 84\ns_cbranch_scc1 R_D" % sIDX)
        self("s_cmp_lt_u32 s%d, 148\ns_cbranch_scc1 R_WO" % sIDX)
        self("s_cmp_lt_u32 s%d, 176\ns_cbranch_scc1 R_R" % sIDX)
        self("s_branch R_N")
    def tag_ready(self):
        self("s_waitcnt lgkmcnt(0)\ns_add_u32 s%d, s%d, 1" % (sTAG, sTAG))
    def role_QGU(self):
        self.lab("R_Q")
        self("s_lshl_b32 s%d, s%d, 3\ns_add_u32 s%d, s%d, s%d" % (sIDX, sHKV, sIDX, sIDX, sD))
        self.srd(srdW, sWQ, 448 * 4096 * 2)
        self("s_mov_b32 s%d, 8192\ns_lshl_b32 s%d, s%d, 9\ns_add_u32 s%d, s%d, %d\ns_branch R_QGU" % (sSTRIDE, sDST, sIDX, sDST, sDST, QB))
        self.lab("R_GU")
        self.srd(srdW, sGATE, 448 * 1792 * 2)
        self("s_mov_b32 s%d, %d\ns_cmp_lt_u32 s%d, 28\ns_cbranch_scc1 L_isg" % (sDST, GB, sIDX))
        self("s_mov_b32 s%d, s%d\ns_mov_b32 s%d, s%d\ns_sub_u32 s%d, s%d, 28\ns_mov_b32 s%d, %d" % (srdW, sUP, srdW + 1, sUP + 1, sIDX, sIDX, sDST, UB))
        self.lab("L_isg")
        self("s_mov_b32 s%d, 3584\ns_lshl_b32 s%d, s%d, 9\ns_add_u32 s%d, s%d, s%d" % (sSTRIDE, sA, sIDX, sDST, sDST, sA))
        self.lab("R_QGU")
        self.code_prefetch("QGU")
        self.srd(srdX, sX, 1792)
        XR = DD
        self("v_lshrrev_b32 v%d, 5, v%d\nv_mul_u32_u24 v%d, 896, v%d\nv_and_b32 v%d, 31, v%d\nv_lshl_add_u32 v%d, v%d, 5, v%d" % (vA, vLANE, vA, vA, vC, vLANE, vB, vC, vA))
        self("v_cmp_le_u32 vcc, 28, v%d\nv_mov_b32 v%d, 0x10000000\nv_cndmask_b32 v%d, v%d, v%d, vcc" % (vC, vC, vB, vB, vC))
        self("buffer_load_dwordx4 v[%d:%d], v%d, s[%d:%d], 0 offen\nbuffer_load_dwordx4 v[%d:%d], v%d, s[%d:%d], 0 offen offset:16" % (XR, XR + 3, vB, srdX, srdX + 3, XR + 4, XR + 7, vB, srdX, srdX + 3))
        self("v_bfe_u32 v%d, v%d, 1, 1\nv_mul_u32_u24 v%d, 896, v%d\nv_lshrrev_b32 v%d, 4, v%d\nv_lshl_add_u32 v%d, v%d, 4, v%d" % (vA, vLANE, vA, vA, vC, vLANE, vA, vC, vA))
        self("v_and_b32 v%d, 1, v%d\nv_lshl_add_u32 v%d, v%d, 3, v%d\ns_lshl_b32 s%d, s%d, 6" % (vC, vLANE, vA, vC, vA, sA, sWAVE))
        self("buffer_load_dwordx2 v[%d:%d], v%d, s[%d:%d], s%d offen" % (XR + 8, XR + 9, vA, srdX, srdX + 3, sA))
        self("s_lshl_b32 s%d, s%d, 5\ns_mul_i32 s%d, s%d, s%d\ns_lshl_b32 s%d, s%d, 7\ns_add_u32 s%d, s%d, s%d" % (sA, sWAVE, sA, sA, sSTRIDE, sDOFF, sIDX, sDOFF, sDOFF, sA))
        self.duty_lane_addr(stride_sgpr=sSTRIDE)
        self.issue_duty()
        nk = self.opt.get("nk", 4)
        self.issue_K(0, nk)
        self.stamp(2)
        FX = DD + 16
        self("s_waitcnt vmcnt(%d)" % (4 + nk))
        for i in range(8):
            self("v_lshlrev_b32 v%d, 16, v%d\nv_and_b32 v%d, 0xffff0000, v%d" % (FX + 2 * i, XR + i, FX + 2 * i + 1, XR + i))
        S = 112; T = 113; U2 = 114; W2 = 115
        self("v_add_f32 v%d, v%d, v%d\nv_add_f32 v%d, v%d, v%d\nv_add_f32 v%d, v%d, v%d\nv_add_f32 v%d, v%d, v%d" % (S, FX, FX + 1, T, FX + 2, FX + 3, U2, FX + 4, FX + 5, W2, FX + 6, FX + 7))
        for k, r in enumerate((S, T, U2, W2)):
            self("v_add_f32 v%d, v%d, v%d" % (r, r, FX + 8 + 2 * k))
        for k, r in enumerate((S, T, U2, W2)):
            self("v_add_f32 v%d, v%d, v%d" % (r, r, FX + 9 + 2 * k))
        self("v_add_f32 v%d, v%d, v%d\nv_add_f32 v%d, v%d, v%d\nv_add_f32 v%d, v%d, v%d" % (S, S, T, U2, U2, W2, S, S, U2))
        self.row_allreduce([S], "v_add_f32"); self.cross16([S], [T], "v_add_f32")
        self("v_mul_f32 v%d, 0x%x, v%d" % (S, f2u(1.0 / 448), S))
        for i in range(16): self("v_sub_f32 v%d, v%d, v%d" % (FX + i, FX + i, S))
        self("v_mul_f32 v%d, v%d, v%d\nv_mul_f32 v%d, v%d, v%d\nv_mul_f32 v%d, v%d, v%d\nv_mul_f32 v%d, v%d, v%d" % (T, FX, FX, U2, FX + 1, FX + 1, W2, FX + 2, FX + 2, vE, FX + 3, FX + 3))
        for i in range(4, 16): self("v_fmac_f32 v%d, v%d, v%d" % ((T, U2, W2, vE)[i % 4], FX + i, FX + i))
        self("v_add_f32 v%d, v%d, v%d\nv_add_f32 v%d, v%d, v%d\nv_add_f32 v%d, v%d, v%d" % (T, T, U2, W2, W2, vE, T, T, W2))
        self.smask(sM0, 0x0FFFFFFF0FFFFFFF)
        self("v_cndmask_b32 v%d, 0, v%d, s[%d:%d]" % (T, T, sM0, sM0 + 1))
        self.row_allreduce([T], "v_add_f32"); self.cross16([T], [U2], "v_add_f32")
        self("v_mul_f32 v%d, 0x%x, v%d" % (T, f2u(1.0 / 448), T))
        self.bf16r(S, S); self.bf16r(T, T)
        self("v_add_f32 v%d, 0x%x, v%d" % (T, f2u(1e-5), T))
        self.bf16r(T, T)
        self("v_sqrt_f32 v%d, v%d" % (T, T))
        self.bf16r(T, T)
        self("v_mov_b32 v%d, v%d\nv_mov_b32 v%d, v%d" % (U2, S, W2, T))
        self("v_permlane32_swap_b32 v%d, v%d\nv_permlane32_swap_b32 v%d, v%d" % (S, U2, T, W2))
        self.smask(sM0, 0xCCCCCCCCCCCCCCCC)
        self("v_cndmask_b32 v%d, v%d, v%d, s[%d:%d]\nv_cndmask_b32 v%d, v%d, v%d, s[%d:%d]" % (S, S, U2, sM0, sM0 + 1, T, T, W2, sM0, sM0 + 1))
        self("v_rcp_f32 v%d, v%d" % (U2, T))
        XA = XR + 8
        E = FX
        self("v_lshlrev_b32 v%d, 16, v%d\nv_and_b32 v%d, 0xffff0000, v%d\nv_lshlrev_b32 v%d, 16, v%d\nv_and_b32 v%d, 0xffff0000, v%d" % (E, XA, E + 1, XA, E + 2, XA + 1, E + 3, XA + 1))
        for k in range(4): self("v_sub_f32 v%d, v%d, v%d" % (E + k, E + k, S))
        self("v_cvt_pk_bf16_f32 v%d, v%d, v%d\nv_cvt_pk_bf16_f32 v%d, v%d, v%d" % (E + 4, E, E + 1, E + 5, E + 2, E + 3))
        self("v_lshlrev_b32 v%d, 16, v%d\nv_and_b32 v%d, 0xffff0000, v%d\nv_lshlrev_b32 v%d, 16, v%d\nv_and_b32 v%d, 0xffff0000, v%d" % (E, E + 4, E + 1, E + 4, E + 2, E + 5, E + 3, E + 5))
        for k in range(4): self("v_mul_f32 v%d, v%d, v%d" % (E + 4 + k, E + k, U2))
        for k in range(4): self("v_fma_f32 v%d, -v%d, v%d, v%d" % (E + 8 + k, E + 4 + k, T, E + k))
        for k in range(4): self("v_fmac_f32 v%d, v%d, v%d" % (E + 4 + k, E + 8 + k, U2))
        self("v_cvt_pk_bf16_f32 v%d, v%d, v%d\nv_cvt_pk_bf16_f32 v%d, v%d, v%d" % (AF, E + 4, E + 5, AF + 1, E + 6, E + 7))
        self("s_waitcnt vmcnt(%d)" % nk)
        self.duty_perm()
        self("s_lshl_b32 s%d, s%d, 9\ns_add_u32 s%d, s%d, %d\nv_lshl_add_u32 v%d, v%d, 5, s%d" % (sA, sWAVE, sA, sA, RED, vF, vLANE, sA))
        self.duty_mfma_post(vF, 256)
        self.tag_ready()
        self("s_barrier")
        l = self.nl("L_nopubq")
        self("s_cmp_lg_u32 s%d, 0\ns_cbranch_scc1 %s" % (sWAVE, l))
        self("v_lshrrev_b32 v%d, 5, v%d\nv_lshlrev_b32 v%d, 12, v%d\nv_and_b32 v%d, 31, v%d\nv_lshlrev_b32 v%d, 4, v%d\nv_add_u32 v%d, v%d, v%d\nv_add_u32 v%d, %d, v%d"
             % (vF, vLANE, vF, vF, vG, vLANE, vG, vG, vF, vF, vG, vF, RED, vF))
        for k in range(8): self("ds_read_b128 v[%d:%d], v%d offset:%d" % (DD + 4 * k, DD + 4 * k + 3, vF, k * 512))
        self("s_waitcnt lgkmcnt(0)")
        for st in (4, 2, 1):
            for k in range(st):
                for j in range(4): self("v_add_f32 v%d, v%d, v%d" % (DD + 4 * k + j, DD + 4 * k + j, DD + 4 * (k + st) + j))
        self.cross32([DD, DD + 1, DD + 2, DD + 3], [DD + 4, DD + 5, DD + 6, DD + 7], "v_add_f32")
        self("v_cvt_pk_bf16_f32 v%d, v%d, v%d\nv_cvt_pk_bf16_f32 v%d, v%d, v%d" % (GR, DD, DD + 1, GR + 2, DD + 2, DD + 3))
        self("v_mov_b32 v%d, s%d\nv_mov_b32 v%d, s%d" % (GR + 1, sTAG, GR + 3, sTAG))
        self.execm(0xFFFFFFFF)
        self("buffer_store_dwordx4 v[%d:%d], v%d, s[%d:%d], s%d offen sc1" % (GR, GR + 3, vG, srdWS, srdWS + 3, sDST))
        self.execm(-1)
        self.lab(l)
        self.stamp(8)
        self.issue_K(nk, 8); self.issue_V()
        self.att_q(); self.att_qk(8); self.att_pv(0)
        self.finish("QGU")
    def role_D(self):
        self.lab("R_D")
        self.code_prefetch("D")
        self("s_sub_u32 s%d, s%d, 56" % (sIDX, sIDX))
        self.srd(srdW, sDOWN, 1792 * 448 * 2)
        self.rowblock_setup()
        self.issue_K(); self.issue_duty(stride_imm=896); self.issue_V()
        self.stamp(2)
        self.tag_ready()
        self.att_q(); self.att_qk(12)
        self("s_lshr_b32 s%d, s%d, 3\ns_mul_i32 s%d, s%d, %d\ns_lshl_b32 s%d, s%d, 9\ns_add_u32 s%d, s%d, s%d\ns_and_b32 s%d, s%d, 7\ns_lshl_b32 s%d, s%d, 6\ns_add_u32 s%d, s%d, s%d\ns_add_u32 s%d, s%d, %d"
             % (sA, sWAVE, sA, sA, UB - GB, sBt, sIDX, sA, sA, sBt, sBt, sWAVE, sBt, sBt, sA, sA, sBt, sA, sA, GB))
        self("s_lshl_b32 s%d, s%d, 5\ns_add_u32 s%d, s%d, %d\nv_lshl_add_u32 v%d, v%d, 2, s%d" % (sDST, sWAVE, sDST, sDST, GU, vF, vLANE, sDST))
        self.poll_scalar(1, "gu")
        self.scalars_to_lds(8, vF)
        self("s_waitcnt lgkmcnt(0)\ns_barrier")
        self.afrag_elem_off(vF, vG, 48)
        self("v_add_u32 v%d, %d, v%d" % (vF, GU, vF))
        self("ds_read_b64 v[%d:%d], v%d\nds_read_b64 v[%d:%d], v%d offset:256" % (DD, DD + 1, vF, DD + 2, DD + 3, vF))
        self("s_waitcnt vmcnt(8)")
        self.duty_perm()
        self("s_waitcnt lgkmcnt(0)")
        for k in range(4):
            self("v_lshlrev_b32 v%d, 16, v%d\nv_and_b32 v%d, 0xffff0000, v%d" % (DD + 4 + 2 * k, DD + k, DD + 5 + 2 * k, DD + k))
        for k in range(4): self("v_mul_f32 v%d, v%d, v%d" % (DD + 4 + k, DD + 4 + k, DD + 8 + k))
        self("v_cvt_pk_bf16_f32 v%d, v%d, v%d\nv_cvt_pk_bf16_f32 v%d, v%d, v%d" % (AF, DD + 4, DD + 5, AF + 1, DD + 6, DD + 7))
        self.rowblock_redaddr(vF)
        self.duty_mfma_post(vF, 1792)
        self("s_waitcnt lgkmcnt(0)\ns_barrier")
        self.publish448(FB, 28 * 256)
        self.stamp(8)
        self.att_pv(0)
        self.finish("D")
    def role_WO(self):
        self.lab("R_WO")
        self.code_prefetch("WO")
        self("s_sub_u32 s%d, s%d, 84" % (sIDX, sIDX))
        self.srd(srdW, sWO, 4096 * 448 * 2)
        self.rowblock_setup()
        self.issue_K(); self.issue_V(); self.issue_duty(stride_imm=896)
        self.stamp(2)
        self.tag_ready()
        self.att_q(); self.att_qk(12); self.att_pv(4)
        self("s_waitcnt vmcnt(1)")
        self.duty_perm()
        self("v_and_b32 v%d, 15, v%d\nv_lshrrev_b32 v%d, 4, v%d\nv_lshlrev_b32 v%d, 4, v%d\nv_lshl_add_u32 v%d, v%d, 9, v%d\nv_lshlrev_b32 v%d, 4, v%d"
             % (vF, vLANE, vG, vLANE, vE, vG, vE, vF, vE, vF, vF))
        self("s_and_b32 s%d, s%d, 1\ns_lshr_b32 s%d, s%d, 1" % (sC, sWAVE, sSTRIDE, sWAVE))
        self("s_lshl_b32 s%d, s%d, 14\ns_lshl_b32 s%d, s%d, 13\ns_add_u32 s%d, s%d, s%d\ns_lshl_b32 s%d, s%d, 6\ns_add_u32 s%d, s%d, s%d\ns_add_u32 s%d, s%d, %d"
             % (sDST, sIDX, sA, sC, sDST, sDST, sA, sA, sSTRIDE, sDST, sDST, sA, sDST, sDST, OB))
        self("s_lshr_b32 s%d, s%d, 2\ns_lshl_b32 s%d, s%d, 4\ns_add_u32 s%d, s%d, s%d\ns_lshl_b32 s%d, s%d, 8\ns_add_u32 s%d, s%d, %d"
             % (sDOFF, sIDX, sA, sC, sDOFF, sDOFF, sA, sDOFF, sDOFF, sDOFF, sDOFF, ML))
        self("s_lshl_b32 s%d, s%d, 7\ns_lshl_b32 s%d, s%d, 4\ns_add_u32 s%d, s%d, s%d\ns_add_u32 s%d, s%d, %d\nv_lshl_add_u32 v%d, v%d, 2, s%d"
             % (sA, sC, sBt, sSTRIDE, sA, sA, sBt, sA, sA, OA, vG, vG, sA))
        self.poll_vector(["buffer_load_dwordx4 v[%d:%d], v%d, s[%d:%d], s%d offen sc1" % (DD, DD + 3, vE, srdWS, srdWS + 3, sDST),
                          "buffer_load_dwordx4 v[%d:%d], v%d, s[%d:%d], s%d offen sc1" % (DD + 4, DD + 7, vF, srdWS, srdWS + 3, sDOFF)],
                         [DD + 1, DD + 3, DD + 5, DD + 7])
        self.stamp(9)
        Mx = DD + 8; Wt = DD + 9; Lw = DD + 10
        self("v_mov_b32 v%d, v%d" % (Mx, DD + 4))
        self.row_allreduce([Mx], "v_max_f32")
        self("v_sub_f32 v%d, v%d, v%d\nv_mul_f32 v%d, 0x%x, v%d\nv_exp_f32 v%d, v%d\nv_mul_f32 v%d, v%d, v%d" % (Wt, DD + 4, Mx, Wt, C_EXP, Wt, Wt, Wt, Lw, Wt, DD + 6))
        self("v_mul_f32 v%d, v%d, v%d\nv_mul_f32 v%d, v%d, v%d" % (DD, DD, Wt, DD + 2, DD + 2, Wt))
        self.row_allreduce([Lw, DD, DD + 2], "v_add_f32")
        self("v_rcp_f32 v%d, v%d\nv_mul_f32 v%d, v%d, v%d\nv_mul_f32 v%d, v%d, v%d" % (Lw, Lw, DD, DD, Lw, DD + 2, DD + 2, Lw))
        self("v_cvt_pk_bf16_f32 v%d, v%d, v%d" % (DD + 1, DD, DD + 2))
        self.execm(0x0001000100010001)
        self("ds_write_b32 v%d, v%d" % (vG, DD + 1))
        self.execm(-1)
        self.afrag_elem_off(vF, vG, 48)
        self("v_add_u32 v%d, %d, v%d" % (vF, OA, vF))
        self("s_waitcnt lgkmcnt(0)\ns_barrier")
        self("ds_read_b64 v[%d:%d], v%d" % (AF, AF + 1, vF))
        self.rowblock_redaddr(vF)
        self("s_waitcnt lgkmcnt(0)")
        self.duty_mfma_post(vF, 1792)
        self("s_waitcnt lgkmcnt(0)\ns_barrier")
        self.publish448(SB, 64 * 256)
        self.stamp(10)
        self.finish("WO")
    def role_R(self):
        self.lab("R_R")
        self.code_prefetch("R")
        self("s_sub_u32 s%d, s%d, 148" % (sIDX, sIDX))
        self.issue_K(); self.issue_V()
        self.stamp(2)
        self.tag_ready()
        self.att_q(); self.att_qk(8); self.att_pv(0)
        self.srd(srdX, sX, 1792); self.srd(srdOUT, sOUT, 1792)
        XV = 48; VO = 49
        self("v_bfe_u32 v%d, v%d, 4, 1\nv_mul_u32_u24 v%d, 896, v%d\nv_and_b32 v%d, 15, v%d\nv_lshl_add_u32 v%d, v%d, 1, v%d\ns_lshl_b32 s%d, s%d, 5\nv_add_u32 v%d, s%d, v%d"
             % (VO, vLANE, VO, VO, vF, vLANE, VO, vF, VO, sA, sIDX, VO, sA, VO))
        self("buffer_load_ushort v%d, v%d, s[%d:%d], 0 offen" % (XV, VO, srdX, srdX + 3))
        l = self.nl("L_nof")
        self("s_cmp_ge_u32 s%d, 7\ns_cbranch_scc1 %s" % (sWAVE, l))
        self("s_mul_i32 s%d, s%d, %d\ns_lshl_b32 s%d, s%d, 10\ns_add_u32 s%d, s%d, s%d\ns_add_u32 s%d, s%d, %d" % (sDST, sIDX, 28 * 256, sA, sWAVE, sDST, sDST, sA, sDST, sDST, FB))
        self.poll_vector(["buffer_load_dwordx4 v[%d:%d], v%d, s[%d:%d], s%d offen sc1" % (DD, DD + 3, vK, srdWS, srdWS + 3, sDST)], [DD + 1, DD + 3])
        self.cross16([DD, DD + 2], [DD + 4, DD + 5], "v_add_f32"); self.cross32([DD, DD + 2], [DD + 4, DD + 5], "v_add_f32")
        self("v_mov_b32 v%d, v%d\ns_lshl_b32 s%d, s%d, 7\ns_add_u32 s%d, s%d, %d\nv_lshl_add_u32 v%d, v%d, 3, s%d" % (DD + 1, DD + 2, sA, sWAVE, sA, sA, RSF, vF, vLANE, sA))
        self.execm(0xFFFF)
        self("ds_write_b64 v%d, v[%d:%d]" % (vF, DD, DD + 1))
        self.execm(-1)
        self.lab(l)
        self.stamp(9)
        self("s_lshl_b32 s%d, s%d, 14\ns_lshl_b32 s%d, s%d, 10\ns_add_u32 s%d, s%d, s%d\ns_add_u32 s%d, s%d, %d" % (sDST, sIDX, sA, sWAVE, sDST, sDST, sA, sDST, sDST, SB))
        self.poll_vector(["buffer_load_dwordx4 v[%d:%d], v%d, s[%d:%d], s%d offen sc1" % (DD, DD + 3, vK, srdWS, srdWS + 3, sDST)], [DD + 1, DD + 3])
        self.stamp(10)
        self.cross16([DD, DD + 2], [DD + 4, DD + 5], "v_add_f32"); self.cross32([DD, DD + 2], [DD + 4, DD + 5], "v_add_f32")
        self("v_mov_b32 v%d, v%d\ns_lshl_b32 s%d, s%d, 7\ns_add_u32 s%d, s%d, %d\nv_lshl_add_u32 v%d, v%d, 3, s%d" % (DD + 1, DD + 2, sA, sWAVE, sA, sA, RS, vF, vLANE, sA))
        self.execm(0xFFFF)
        self("ds_write_b64 v%d, v[%d:%d]" % (vF, DD, DD + 1))
        self.execm(-1)
        self("s_waitcnt lgkmcnt(0)\ns_barrier")
        l = self.nl("L_nofin")
        self("s_cmp_lg_u32 s%d, 0\ns_cbranch_scc1 %s" % (sWAVE, l))
        self("v_and_b32 v%d, 31, v%d\nv_lshlrev_b32 v%d, 2, v%d\nv_add_u32 v%d, %d, v%d" % (vF, vLANE, vF, vF, vF, RS, vF))
        for w in range(16): self("ds_read_b32 v%d, v%d offset:%d" % (DD + w, vF, w * 128))
        self("s_waitcnt lgkmcnt(0)")
        for w in range(7): self("ds_read_b32 v%d, v%d offset:%d" % (DD + 16 + w, vF, 2048 + w * 128))
        for st in (8, 4, 2, 1):
            for k in range(st): self("v_add_f32 v%d, v%d, v%d" % (DD + k, DD + k, DD + k + st))
        self("s_waitcnt lgkmcnt(0)")
        F = DD + 16
        self("v_add_f32 v%d, v%d, v%d\nv_add_f32 v%d, v%d, v%d\nv_add_f32 v%d, v%d, v%d\nv_add_f32 v%d, v%d, v%d\nv_add_f32 v%d, v%d, v%d\nv_add_f32 v%d, v%d, v%d"
             % (F, F, F + 1, F + 2, F + 2, F + 3, F + 4, F + 4, F + 5, F, F, F + 2, F + 4, F + 4, F + 6, F, F, F + 4))
        self.bf16r(DD, DD); self.bf16r(F, F)
        self("v_mul_f32 v%d, 0x%x, v%d\nv_exp_f32 v%d, v%d\nv_add_f32 v%d, 1.0, v%d\nv_rcp_f32 v%d, v%d\nv_mul_f32 v%d, v%d, v%d" % (F + 1, f2u(-LOG2E), F, F + 1, F + 1, F + 1, F + 1, F + 1, F + 1, F, F, F + 1))
        self.bf16r(F, F)
        self("v_mul_f32 v%d, v%d, v%d" % (DD, DD, F))
        self.bf16r(DD, DD)
        self("s_waitcnt vmcnt(0)")
        self("v_lshlrev_b32 v%d, 16, v%d\nv_add_f32 v%d, v%d, v%d\nv_cvt_pk_bf16_f32 v%d, v%d, v%d" % (XV, XV, DD, DD, XV, DD, DD, DD))
        self.execm(0xFFFFFFFF)
        self("buffer_store_short v%d, v%d, s[%d:%d], 0 offen" % (DD, VO, srdOUT, srdOUT + 3))
        self.execm(-1)
        l2 = self.nl("L_noep")
        self("s_cmp_lg_u32 s%d, 0\ns_cbranch_scc1 %s" % (sIDX, l2))
        self("v_mov_b32 v%d, s%d\nv_mov_b32 v%d, 0" % (vF, sTAG, vG))
        self.execm(1)
        self("buffer_store_dword v%d, v%d, s[%d:%d], 0 offen sc1" % (vF, vG, srdWS, srdWS + 3))
        self.execm(-1)
        self.lab(l2)
        self.lab(l)
        self.finish("R")
    def role_N(self):
        self.lab("R_N")
        self.code_prefetch("N")
        self.issue_K(); self.issue_V()
        self.stamp(2)
        self.tag_ready()
        self.att_q(); self.att_qk(8); self.att_pv(0)
        self.finish("N")

def gen(**opt):
    g = G(opt)
    g.prologue()
    g.role_N(); g.role_R(); g.role_WO(); g.role_D(); g.role_QGU()
    g.lab("L_exit")
    g("s_endpgm")
    lines = hazard.resolve(g.a.lines)
    body = "\n".join(lines) + "\n"
    return wrap(body, (256, 1, 1), (1024, 1, 1), LDS_BYTES, vgpr=128)
if __name__ == "__main__":
    import argparse
    p = argparse.ArgumentParser()
    p.add_argument("-o", default="recurrent_scan__sliding_block_cached__glu_gated_bilinear__decode.s")
    p.add_argument("--stamps", type=int, default=0)
    p.add_argument("--opt", default="")
    x = p.parse_args()
    opt = dict(stamps=x.stamps)
    for kv in x.opt.split(","):
        if kv: k, v = kv.split("="); opt[k] = int(v)
    open(x.o, "w").write(gen(**opt))
    print("written", x.o)
```

```python
import sys, struct
from asmlib import *
import hazard

EPOCH = 0
QB = 4096; GB = 36864; UB = 51200; ML = 65536; FB = 73728; SB = 274432; OB = 1048576
STAMPA = 8 << 20
QS = 131072; PS = 132096; MX = 133120; LS = 133248; GU = 133376; OA = 133888
RS = 134400; RSF = RS + 2048; RED = 138496; FLG = RED + 4096
LDS_BYTES = 163840
LOG2E = 1.4426950408889634
def f2u(x): return struct.unpack("<I", struct.pack("<f", x))[0]
C_EXP = f2u(LOG2E / 16.0)

sWAVE = 3
sX, sK, sV, sWQ, sWO, sGATE, sUP = 4, 6, 8, 10, 12, 16, 18
sDOWN, sOUT, sWS = 20, 22, 26
srdK, srdV, srdW, srdWS, srdX, srdOUT = 28, 32, 36, 40, 44, 48
sTAG = 52; sHKV = 53; sB = 54; sSPLIT = 55; sD = 56
sA = 57; sBt = 58; sKVOFF = 59; sSTRIDE = 60; sDST = 61; sLOOP = 62; sC = 63
sP0 = 64
sSELLO = 96; sSELHI = 97; sM0 = 98; sIDX = 100; sDOFF = 101
sQPOLL = 6; sOPUB = 7; sMLPUB = 8; sP1 = 15; sP2 = 24; sP3 = 25

vLANE = 1; vK = 2; vV0 = 3
vA = 7; vB = 8; vC = 9; vDo = 10; vE = 11; vF = 12; vG = 13; vH = 14; vI = 15
KR = 16; RAW = 48; DD = 80; ACC = 112; GR = 116; vL16 = 126; vST = 127
vJ = 88
aQW = 2
aQA, aMXW, aMXR, aPS = 48, 49, 50, 51
aT1, aT2, aOP, aPA, aLSR, aMLH = 120, 121, 122, 123, 124, 125
DPPALL = "row_mask:0xf bank_mask:0xf"

class G:
    def __init__(self, opt):
        self.a = Asm(); self.opt = opt
    def __call__(self, s): self.a(s)
    def lab(self, n): self.a.label(n)
    def nl(self, p): return self.a.newlabel(p)
    def stamp(self, k, wave=0):
        if not self.opt.get("stamps"): return
        l = self.nl("L_st")
        self("s_cmp_lg_u32 s%d, %d\ns_cbranch_scc1 %s" % (sWAVE, wave, l))
        self("s_memtime s[%d:%d]\ns_waitcnt lgkmcnt(0)\nv_writelane_b32 v%d, s%d, %d" % (sM0, sM0 + 1, vST, sM0, k))
        self.lab(l)
    def srd(self, d, p, size):
        self("s_mov_b32 s%d, s%d\ns_mov_b32 s%d, s%d\ns_mov_b32 s%d, 0x%x\ns_mov_b32 s%d, 0x20000" % (d, p, d + 1, p + 1, d + 2, size, d + 3))
    def execm(self, mask):
        if mask == -1: self("s_mov_b64 exec, -1")
        elif mask <= 64: self("s_mov_b64 exec, %d" % mask)
        elif mask < (1 << 32): self("s_mov_b32 exec_lo, 0x%x\ns_mov_b32 exec_hi, 0" % mask)
        else: self("s_mov_b32 exec_lo, 0x%x\ns_mov_b32 exec_hi, 0x%x" % (mask & 0xffffffff, mask >> 32))
    def smask(self, s, mask):
        self("s_mov_b32 s%d, 0x%x\ns_mov_b32 s%d, 0x%x" % (s, mask & 0xffffffff, s + 1, mask >> 32))
    def row_allreduce(self, regs, op, steps=(8, 4, 2, 1)):
        for st in steps:
            for r in regs: self("%s_dpp v%d, v%d, v%d row_ror:%d %s" % (op, r, r, r, st, DPPALL))
    def cross16(self, regs, tmps, op):
        for r, t in zip(regs, tmps): self("v_mov_b32 v%d, v%d" % (t, r))
        for r, t in zip(regs, tmps): self("v_permlane16_swap_b32 v%d, v%d" % (r, t))
        for r, t in zip(regs, tmps): self("%s v%d, v%d, v%d" % (op, r, r, t))
    def cross32(self, regs, tmps, op):
        for r, t in zip(regs, tmps): self("v_mov_b32 v%d, v%d" % (t, r))
        for r, t in zip(regs, tmps): self("v_permlane32_swap_b32 v%d, v%d" % (r, t))
        for r, t in zip(regs, tmps): self("%s v%d, v%d, v%d" % (op, r, r, t))
    def bf16r(self, d, s):
        self("v_cvt_pk_bf16_f32 v%d, v%d, v%d\nv_lshlrev_b32 v%d, 16, v%d" % (d, s, s, d, d))
    def prio(self, p):
        if self.opt.get("prio", 1): self("s_setprio %d" % p)
    def if_wave_lt(self, n):
        l = self.nl("L_w")
        self("s_cmp_ge_u32 s%d, %d\ns_cbranch_scc1 %s" % (sWAVE, n, l))
        return l
    def if_wave_eq(self, n):
        l = self.nl("L_w")
        self("s_cmp_lg_u32 s%d, %d\ns_cbranch_scc1 %s" % (sWAVE, n, l))
        return l
    def wait_vm_by_duty(self, nduty, nother, extra=""):
        if nduty == nother:
            self("s_waitcnt vmcnt(%d) %s" % (nduty, extra)); return
        l1 = self.nl("L_wv"); l2 = self.nl("L_wv")
        self("s_cmp_lt_u32 s%d, 7\ns_cbranch_scc1 %s\ns_waitcnt vmcnt(%d) %s\ns_branch %s" % (sWAVE, l1, nother, extra, l2))
        self.lab(l1)
        self("s_waitcnt vmcnt(%d) %s" % (nduty, extra))
        self.lab(l2)

    def code_prefetch(self, role):
        self("s_getpc_b64 s[%d:%d]" % (sM0, sM0 + 1))
        pc = self.nl("L_pc")
        self.lab(pc)
        self("s_lshl_b32 s%d, s%d, 10" % (sA, sWAVE))
        self("v_add_u32 v%d, s%d, v%d" % (vE, sA, vL16))
        self("v_min_u32 v%d, L_end_%s-%s-16, v%d" % (vE, role, pc, vE))
        self("global_load_dwordx4 v[%d:%d], v%d, s[%d:%d]" % (vJ, vJ + 3, vE, sM0, sM0 + 1))
    def issue_K(self, lo=0, hi=8):
        for i in range(lo, hi):
            if i % 4 == 0 or i == lo: self("s_add_u32 s%d, s%d, %d" % (sA, sKVOFF, (i // 4) * 4096))
            self("buffer_load_dwordx4 v[%d:%d], v%d, s[%d:%d], s%d offen offset:%d nt" % (KR + 4 * i, KR + 4 * i + 3, vK, srdK, srdK + 3, sA, (i % 4) * 128))
    def issue_V(self, p=1):
        self.prio(p)
        for i in range(8):
            if i % 4 == 0:
                self("s_lshl_b32 s%d, s%d, 13\ns_add_u32 m0, s%d, %d\ns_add_u32 s%d, s%d, %d" % (sBt, sWAVE, sBt, i * 1024, sA, sKVOFF, i * 1024))
            self("buffer_load_dwordx4 v%d, s[%d:%d], s%d offen offset:%d nt lds" % (vV0 + (i % 4), srdV, srdV + 3, sA, (i % 4) * 1024))
    def issue_duty(self):
        self("s_mov_b32 s%d, s%d" % (sA, sDOFF))
        for i in range(8):
            self("buffer_load_dwordx4 v[%d:%d], v%d, s[%d:%d], s%d offen nt" % (RAW + 4 * i, RAW + 4 * i + 3, vDo, srdW, srdW + 3, sA))
            if i < 7: self("s_add_u32 s%d, s%d, s%d" % (sA, sA, sSTRIDE))
    def duty_lane_addr(self):
        self("v_lshrrev_b32 v%d, 3, v%d\nv_and_b32 v%d, 7, v%d\nv_lshlrev_b32 v%d, 4, v%d" % (vE, vLANE, vDo, vLANE, vDo, vDo))
        self("s_lshl_b32 s%d, s%d, 3\nv_mul_u32_u24 v%d, s%d, v%d\nv_add_u32 v%d, v%d, v%d" % (sA, sSTRIDE, vE, sA, vE, vDo, vDo, vE))
    def duty_perm(self, BF):
        self("s_mov_b32 s%d, 0x05040100\ns_mov_b32 s%d, 0x07060302" % (sSELLO, sSELHI))
        for e in range(8):
            sel = sSELHI if e & 1 else sSELLO
            for p in range(4):
                self("v_perm_b32 v%d, v%d, v%d, s%d" % (BF + 4 * e + p, RAW + 4 * (2 * p + 1) + (e >> 1), RAW + 4 * (2 * p) + (e >> 1), sel))
    def duty_mfma(self, AFr, BF, X):
        D = RAW
        for e in range(8):
            self("v_mfma_f32_16x16x32_bf16 v[%d:%d], v[%d:%d], v[%d:%d], 0" % (D + 4 * e, D + 4 * e + 3, AFr, AFr + 3, BF + 4 * e, BF + 4 * e + 3))
        Y0, Y2, Z0, Z2 = X, X + 2, vH, vI
        for gp in range(4):
            rm = 1 << gp
            e0, e1 = 2 * gp, 2 * gp + 1
            self("v_add_f32_dpp v%d, v%d, v%d row_ror:8 row_mask:0x%x bank_mask:0x3" % (Y0, D + 4 * e0 + 1, D + 4 * e0, rm))
            self("v_add_f32_dpp v%d, v%d, v%d row_ror:8 row_mask:0x%x bank_mask:0x3" % (Y2, D + 4 * e1 + 1, D + 4 * e1, rm))
            self("v_add_f32_dpp v%d, v%d, v%d row_ror:8 row_mask:0x%x bank_mask:0xc" % (Z0, D + 4 * e0 + 2, D + 4 * e0 + 3, rm))
            self("v_add_f32_dpp v%d, v%d, v%d row_ror:8 row_mask:0x%x bank_mask:0xc" % (Z2, D + 4 * e1 + 2, D + 4 * e1 + 3, rm))
        self("v_mov_b32_dpp v%d, v%d quad_perm:[0,1,2,3] row_mask:0xf bank_mask:0xc" % (Y0, Z0))
        self("v_mov_b32_dpp v%d, v%d quad_perm:[0,1,2,3] row_mask:0xf bank_mask:0xc" % (Y2, Z2))
    def poll_scalar(self, nbuf, soff):
        lp = self.nl("L_ps"); dn = self.nl("L_pd")
        self("s_mov_b32 s%d, %d" % (sLOOP, self.opt.get("maxpoll", 20000)))
        self.lab(lp)
        for k in range(nbuf):
            self("s_load_dwordx16 s[%d:%d], s[%d:%d], s%d offset:%d glc" % (sP0 + 16 * k, sP0 + 16 * k + 15, sWS, sWS + 1, soff, 64 * k))
        self("s_waitcnt lgkmcnt(0)")
        tags = [sP0 + 1 + 2 * i for i in range(8 * nbuf)]
        self("s_and_b32 s%d, s%d, s%d\ns_or_b32 s%d, s%d, s%d" % (sBt, tags[0], tags[1], sC, tags[0], tags[1]))
        for t in tags[2:]:
            self("s_and_b32 s%d, s%d, s%d\ns_or_b32 s%d, s%d, s%d" % (sBt, sBt, t, sC, sC, t))
        self("s_xor_b32 s%d, s%d, s%d\ns_xor_b32 s%d, s%d, s%d\ns_or_b32 s%d, s%d, s%d" % (sBt, sBt, sTAG, sC, sC, sTAG, sBt, sBt, sC))
        self("s_cbranch_scc0 %s" % dn)
        self("s_sleep %d" % self.opt.get("sleep", 2))
        self("s_sub_u32 s%d, s%d, 1\ns_cmp_lg_u32 s%d, 0\ns_cbranch_scc1 %s" % (sLOOP, sLOOP, sLOOP, lp))
        self.lab(dn)
    def scalars_to_lds(self, n, vaddr):
        for i in range(n):
            self("v_writelane_b32 v%d, s%d, %d" % (vE, sP0 + 2 * i, i))
        self.execm((1 << n) - 1)
        self("ds_write_b32 v%d, v%d" % (vaddr, vE))
        self.execm(-1)
    def masked_poll(self, load, tagregs, first_wait):
        lp = self.nl("L_mp"); dn = self.nl("L_mpd"); ck = self.nl("L_mpc")
        self("s_mov_b32 s%d, %d" % (sLOOP, self.opt.get("maxpoll", 20000)))
        self("s_waitcnt vmcnt(%d)\ns_branch %s" % (first_wait, ck))
        self.lab(lp)
        if self.opt.get("vsleep", 1): self("s_sleep %d" % self.opt.get("vsleep", 1))
        self(load)
        self("s_waitcnt vmcnt(0)")
        self.lab(ck)
        self("v_cmp_ne_u32 vcc, s%d, v%d" % (sTAG, tagregs[0]))
        if len(tagregs) > 1:
            self("v_cmp_ne_u32 s[%d:%d], s%d, v%d" % (sM0, sM0 + 1, sTAG, tagregs[1]))
            self("s_or_b64 vcc, vcc, s[%d:%d]" % (sM0, sM0 + 1))
            self("s_cbranch_scc0 %s" % dn)
        else:
            self("s_cbranch_vccz %s" % dn)
        self("s_mov_b64 exec, vcc")
        self("s_sub_u32 s%d, s%d, 1\ns_cmp_lg_u32 s%d, 0\ns_cbranch_scc1 %s" % (sLOOP, sLOOP, sLOOP, lp))
        self.lab(dn)
        self("s_mov_b64 exec, -1")

    def att_prep(self):
        L = vLANE
        if self.opt.get("qearly", 1):
            self("s_lshl_b32 s%d, s%d, 3\ns_add_u32 s%d, s%d, s%d\ns_lshl_b32 s%d, s%d, 9" % (sA, sHKV, sA, sA, sWAVE, sA, sA))
            self("s_lshl_b32 s%d, s%d, 8\ns_add_u32 s%d, s%d, s%d\ns_add_u32 s%d, s%d, %d" % (sBt, sB, sA, sA, sBt, sQPOLL, sA, QB))
            self("s_lshl_b32 s%d, s%d, 7\ns_add_u32 s%d, s%d, %d\nv_lshl_add_u32 v%d, v%d, 2, s%d" % (sA, sWAVE, sA, sA, QS, aQW, L, sA))
        else:
            self("s_lshl_b32 s%d, s%d, 3\ns_lshr_b32 s%d, s%d, 1\ns_add_u32 s%d, s%d, s%d\ns_lshl_b32 s%d, s%d, 9" % (sA, sHKV, sBt, sWAVE, sA, sA, sBt, sA, sA))
            self("s_lshl_b32 s%d, s%d, 8\ns_add_u32 s%d, s%d, s%d" % (sBt, sB, sA, sA, sBt))
            self("s_and_b32 s%d, s%d, 1\ns_lshl_b32 s%d, s%d, 7\ns_add_u32 s%d, s%d, s%d\ns_add_u32 s%d, s%d, %d" % (sBt, sWAVE, sBt, sBt, sA, sA, sBt, sQPOLL, sA, QB))
            self("s_lshl_b32 s%d, s%d, 6\ns_add_u32 s%d, s%d, %d\nv_lshl_add_u32 v%d, v%d, 2, s%d" % (sA, sWAVE, sA, sA, QS, aQW, L, sA))
        t0, t1, t2 = vE, vH, vI
        self("v_bfe_u32 v%d, v%d, 1, 1\nv_lshlrev_b32 v%d, 9, v%d\nv_and_b32 v%d, 1, v%d\nv_lshl_add_u32 v%d, v%d, 6, v%d" % (t0, L, t0, t0, t1, L, t0, t1, t0))
        self("v_lshrrev_b32 v%d, 4, v%d\nv_lshl_add_u32 v%d, v%d, 4, v%d\nv_add_u32 v%d, %d, v%d" % (t2, L, t0, t2, t0, aQA, QS, t0))
        self("s_lshl_b32 s%d, s%d, 3\ns_add_u32 s%d, s%d, %d\nv_mov_b32 v%d, s%d" % (sA, sWAVE, sA, sA, MX, aMXW, sA))
        self("v_lshlrev_b32 v%d, 9, v%d\nv_lshl_add_u32 v%d, v%d, 4, v%d\nv_add_u32 v%d, %d, v%d" % (t1, t1, t1, t2, t1, aPA, PS, t1))
        self("v_and_b32 v%d, 15, v%d\nv_lshlrev_b32 v%d, 3, v%d\nv_add_u32 v%d, %d, v%d" % (t0, L, t1, t0, aMXR, MX, t1))
        self("v_lshlrev_b32 v%d, 16, v%d\nv_add_u32 v%d, v%d, v%d" % (aOP, t2, aOP, aOP, t1))
        self("v_and_b32 v%d, 1, v%d\nv_lshl_add_u32 v%d, v%d, 2, v%d\nv_add_u32 v%d, %d, v%d" % (t2, t2, t1, t2, t1, aLSR, LS, t1))
        self("s_lshr_b32 s%d, s%d, 1\ns_lshl_b32 s%d, s%d, 6\ns_and_b32 s%d, s%d, 1\ns_lshl_b32 s%d, s%d, 3\ns_add_u32 s%d, s%d, s%d\ns_add_u32 s%d, s%d, %d"
             % (sA, sWAVE, sA, sA, sBt, sWAVE, sBt, sBt, sA, sA, sBt, sA, sA, PS))
        self("v_lshrrev_b32 v%d, 2, v%d\nv_lshlrev_b32 v%d, 4, v%d\nv_and_b32 v%d, 3, v%d\nv_lshl_add_u32 v%d, v%d, 1, v%d\nv_add_u32 v%d, s%d, v%d" % (t0, t0, t0, t0, t1, L, t0, t1, t0, aPS, sA, t0))
        self("v_lshrrev_b32 v%d, 2, v%d\nv_and_b32 v%d, 7, v%d\nv_xor_b32 v%d, s%d, v%d\nv_lshlrev_b32 v%d, 5, v%d" % (t0, L, t2, t0, t2, sWAVE, t2, t2, t2))
        self("v_lshl_add_u32 v%d, v%d, 9, v%d\nv_lshl_add_u32 v%d, v%d, 3, v%d\nv_add_u32 v%d, 0x10000, v%d" % (t0, t0, t2, aT1, t1, t0, aT2, aT1))
        self("s_lshl_b32 s%d, s%d, 3\ns_lshr_b32 s%d, s%d, 2\ns_add_u32 s%d, s%d, s%d\ns_lshl_b32 s%d, s%d, 14" % (sA, sHKV, sBt, sWAVE, sA, sA, sBt, sA, sA))
        self("s_lshl_b32 s%d, s%d, 13\ns_add_u32 s%d, s%d, s%d\ns_lshl_b32 s%d, s%d, 9\ns_add_u32 s%d, s%d, s%d" % (sBt, sB, sA, sA, sBt, sBt, sSPLIT, sA, sA, sBt))
        self("s_and_b32 s%d, s%d, 3\ns_lshl_b32 s%d, s%d, 7\ns_add_u32 s%d, s%d, s%d\ns_add_u32 s%d, s%d, %d" % (sBt, sWAVE, sBt, sBt, sA, sA, sBt, sOPUB, sA, OB))
    def att_q(self):
        if self.opt.get("qearly", 1):
            l = self.if_wave_lt(8)
            self.poll_scalar(2, sQPOLL)
            self.scalars_to_lds(16, aQW)
            self("s_add_u32 s%d, s%d, 128\nv_add_u32 v%d, 64, v%d" % (sQPOLL, sQPOLL, aQW, aQW))
            self.poll_scalar(2, sQPOLL)
            self.stamp(3)
            self.scalars_to_lds(16, aQW)
            self.lab(l)
        else:
            self.poll_scalar(2, sQPOLL)
            self.stamp(3)
            self.scalars_to_lds(16, aQW)
        self("s_waitcnt lgkmcnt(0)\ns_barrier")
        QA = DD + 16
        for t in range(4): self("ds_read_b128 v[%d:%d], v%d offset:%d" % (QA + 4 * t, QA + 4 * t + 3, aQA, t * 128))
    def att_qk(self, late_duty=False):
        QA = DD + 16; D0 = DD; D1 = DD + 4
        self("s_waitcnt vmcnt(8) lgkmcnt(0)")
        self.stamp(4)
        for t in range(4):
            for o, D in ((0, D0), (1, D1)):
                self("v_mfma_f32_16x16x32_bf16 v[%d:%d], v[%d:%d], v[%d:%d], %s" % (D, D + 3, QA + 4 * t, QA + 4 * t + 3, KR + 16 * o + 4 * t, KR + 16 * o + 4 * t + 3, "0" if t == 0 else "v[%d:%d]" % (D, D + 3)))
        F0, F1 = DD + 8, DD + 9
        for h, F in ((0, F0), (1, F1)):
            self("v_add_f32_dpp v%d, v%d, v%d row_ror:8 row_mask:0xf bank_mask:0x3" % (F, D0 + 2 * h + 1, D0 + 2 * h))
        for h, F in ((0, F0), (1, F1)):
            self("v_add_f32_dpp v%d, v%d, v%d row_ror:8 row_mask:0xf bank_mask:0xc" % (F, D1 + 2 * h, D1 + 2 * h + 1))
        self("v_cvt_pk_bf16_f32 v%d, v%d, v%d" % (DD + 10, F0, F1))
        self("v_lshlrev_b32 v%d, 16, v%d\nv_and_b32 v%d, 0xffff0000, v%d" % (F0, DD + 10, F1, DD + 10))
        M0, M1 = DD + 12, DD + 13
        self("v_max_f32_dpp v%d, v%d, v%d row_ror:8 %s\nv_max_f32_dpp v%d, v%d, v%d row_ror:8 %s" % (M0, F0, F0, DPPALL, M1, F1, F1, DPPALL))
        self.row_allreduce([M0, M1], "v_max_f32", (4, 2, 1))
        self.execm(1)
        self("ds_write_b64 v%d, v[%d:%d]" % (aMXW, M0, M1))
        self.execm(-1)
        self("s_waitcnt lgkmcnt(0)\ns_barrier")
        self("ds_read_b64 v[%d:%d], v%d\ns_waitcnt lgkmcnt(0)" % (M0, M1, aMXR))
        self.row_allreduce([M0, M1], "v_max_f32")
        P0, P1 = DD + 14, DD + 15
        self("v_sub_f32 v%d, v%d, v%d\nv_sub_f32 v%d, v%d, v%d" % (P0, F0, M0, P1, F1, M1))
        self("v_mul_f32 v%d, 0x%x, v%d\nv_mul_f32 v%d, 0x%x, v%d" % (P0, C_EXP, P0, P1, C_EXP, P1))
        self("v_exp_f32 v%d, v%d\nv_exp_f32 v%d, v%d" % (P0, P0, P1, P1))
        PK = DD + 10; S0, S1 = DD + 16, DD + 17
        self("v_cvt_pk_bf16_f32 v%d, v%d, v%d" % (PK, P0, P1))
        self("v_add_f32_dpp v%d, v%d, v%d row_ror:8 %s\nv_add_f32_dpp v%d, v%d, v%d row_ror:8 %s" % (S0, P0, P0, DPPALL, S1, P1, P1, DPPALL))
        self.execm(0xFFFF)
        self("ds_write_b16 v%d, v%d\nds_write_b16_d16_hi v%d, v%d offset:512" % (aPS, PK, aPS, PK))
        self.execm(-1)
        self.row_allreduce([S0, S1], "v_add_f32", (4, 2, 1))
        self.execm(1)
        self("ds_write_b64 v%d, v[%d:%d] offset:%d" % (aMXW, S0, S1, LS - MX))
        self.execm(-1)
        self("s_waitcnt lgkmcnt(0)\ns_barrier")
        if late_duty and not self.opt.get("dlate", 0):
            l = self.if_wave_lt(7)
            self.issue_duty()
            self.lab(l)
        for T in range(8):
            self("ds_read_b128 v[%d:%d], v%d offset:%d" % (KR + 4 * T, KR + 4 * T + 3, aPA, T * 64))
        self("ds_read_b32 v%d, v%d" % (GR + 2, aLSR))
        self.smask(sM0, 0xFFFF0000FFFF0000)
        self("v_cndmask_b32 v%d, v%d, v%d, s[%d:%d]" % (GR, M0, M1, sM0, sM0 + 1))
        self("v_mov_b32 v%d, s%d" % (GR + 3, sTAG))
        self("s_waitcnt lgkmcnt(0)")
        self.row_allreduce([GR + 2], "v_add_f32")
        self.smask(sM0, 0xCCCCCCCCCCCCCCCC)
        self("v_cndmask_b32 v%d, v%d, v%d, s[%d:%d]" % (GR + 2, GR, GR + 2, sM0, sM0 + 1))
        self.stamp(5)
    def att_pv(self, late_duty=False):
        VB = DD
        if late_duty and not self.opt.get("dlate", 0): self.wait_vm_by_duty(8, 0, "lgkmcnt(0)")
        else: self("s_waitcnt vmcnt(0) lgkmcnt(0)")
        self("s_barrier")
        self.stamp(6)
        for T in range(8):
            base = aT1 if T < 4 else aT2
            o = (T % 4) * 16384
            self("ds_read_b64_tr_b16 v[%d:%d], v%d offset:%d" % (VB + 4 * T, VB + 4 * T + 1, base, o))
            self("ds_read_b64_tr_b16 v[%d:%d], v%d offset:%d" % (VB + 4 * T + 2, VB + 4 * T + 3, base, o + 8192))
        for T in range(8):
            self("s_waitcnt lgkmcnt(%d)" % (14 - 2 * T))
            self("v_mfma_f32_16x16x32_bf16 v[%d:%d], v[%d:%d], v[%d:%d], %s" % (ACC, ACC + 3, KR + 4 * T, KR + 4 * T + 3, VB + 4 * T, VB + 4 * T + 3, "0" if T == 0 else "v[%d:%d]" % (ACC, ACC + 3)))
        self("v_permlane16_swap_b32 v%d, v%d" % (ACC, ACC + 1))
        self("v_mov_b32 v%d, v%d" % (GR, ACC))
        self("v_mov_b32_dpp v%d, v%d quad_perm:[1,0,3,2] %s" % (GR + 1, ACC, DPPALL))
        self.execm(0x55555555)
        self("buffer_store_dwordx4 v[%d:%d], v%d, s[%d:%d], s%d offen sc1" % (GR, GR + 3, aOP, srdWS, srdWS + 3, sOPUB))
        self.execm(-1)
        self.stamp(7)
        if late_duty and self.opt.get("dlate", 0):
            l = self.if_wave_lt(7)
            self.issue_duty()
            self.lab(l)
    def rowblock_setup(self):
        self("s_mov_b32 s%d, 896\ns_mul_i32 s%d, s%d, 57344\ns_lshl_b32 s%d, s%d, 7\ns_add_u32 s%d, s%d, s%d" % (sSTRIDE, sDOFF, sIDX, sA, sWAVE, sDOFF, sDOFF, sA))
        self.duty_lane_addr()
    def afrag_off(self, v, base, bstride_shift):
        self("v_bfe_u32 v%d, v%d, 1, 1\nv_lshlrev_b32 v%d, %d, v%d\nv_lshrrev_b32 v%d, 4, v%d\nv_lshl_add_u32 v%d, v%d, 5, v%d" % (v, vLANE, v, bstride_shift, v, vE, vLANE, v, vE, v))
        self("v_and_b32 v%d, 1, v%d\nv_lshl_add_u32 v%d, v%d, 4, v%d\nv_add_u32 v%d, %d, v%d" % (vE, vLANE, v, vE, v, v, base, v))
    def pub_addr(self, v, base, strideR, sdst):
        self("v_bfe_u32 v%d, v%d, 1, 2\nv_mul_u32_u24 v%d, %d, v%d" % (v, vLANE, v, strideR, v))
        self("v_bfe_u32 v%d, v%d, 3, 1\nv_lshl_add_u32 v%d, v%d, 7, v%d" % (vE, vLANE, v, vE, v))
        self("v_and_b32 v%d, 1, v%d\nv_lshl_add_u32 v%d, v%d, 6, v%d" % (vE, vLANE, v, vE, v))
        self("v_lshrrev_b32 v%d, 4, v%d\nv_lshl_add_u32 v%d, v%d, 4, v%d" % (vE, vLANE, v, vE, v))
        self("s_mul_i32 s%d, s%d, %d\ns_lshl_b32 s%d, s%d, 8\ns_add_u32 s%d, s%d, s%d\ns_add_u32 s%d, s%d, %d" % (sA, sWAVE, 4 * strideR, sdst, sIDX, sdst, sdst, sA, sdst, sdst, base))
    def finish(self, role):
        if self.opt.get("stamps"):
            l = self.if_wave_eq(0)
            self.stamp(15)
            self("s_lshl_b32 s%d, s2, 8\ns_add_u32 s%d, s%d, %d" % (sA, sA, sA, STAMPA))
            self("v_lshlrev_b32 v%d, 2, v%d" % (vF, vLANE))
            self("buffer_store_dword v%d, v%d, s[%d:%d], s%d offen" % (vST, vF, srdWS, srdWS + 3, sA))
            self.lab(l)
        self("s_endpgm")
        self.lab("L_end_%s" % role)

    def prologue(self):
        self("s_cmp_ge_u32 s2, 256\ns_cbranch_scc1 L_exit")
        self("s_load_dwordx16 s[4:19], s[0:1], 0\ns_load_dwordx8 s[20:27], s[0:1], 64")
        self.prio(3)
        self("v_and_b32 v%d, 63, v0\nv_lshrrev_b32 v%d, 6, v0" % (vLANE, vA))
        self("s_and_b32 s%d, s2, 7\ns_lshr_b32 s%d, s2, 3" % (sHKV, sD))
        self("v_readfirstlane_b32 s%d, v%d" % (sWAVE, vA))
        self("s_and_b32 s%d, s%d, 1\ns_lshr_b32 s%d, s%d, 1" % (sB, sD, sSPLIT, sD))
        self("s_lshl_b32 s%d, s%d, 3\ns_add_u32 s%d, s%d, s%d\ns_lshl_b32 s%d, s%d, 15\ns_add_u32 s%d, s%d, 28672" % (sA, sB, sA, sA, sHKV, sA, sA, sA, sA))
        self("s_lshl_b32 s%d, s%d, 8\ns_add_u32 s%d, s%d, s%d\ns_lshl_b32 s%d, s%d, 4\ns_add_u32 s%d, s%d, s%d\ns_lshl_b32 s%d, s%d, 9" % (sBt, sSPLIT, sA, sA, sBt, sBt, sWAVE, sA, sA, sBt, sKVOFF, sA))
        self("v_lshlrev_b32 v%d, 4, v%d" % (vL16, vLANE))
        self("v_and_b32 v%d, 7, v%d\nv_lshlrev_b32 v%d, 9, v%d\nv_bfe_u32 v%d, v%d, 3, 1\nv_lshl_add_u32 v%d, v%d, 6, v%d\nv_lshrrev_b32 v%d, 4, v%d\nv_lshl_add_u32 v%d, v%d, 4, v%d"
             % (vK, vLANE, vK, vK, vA, vLANE, vK, vA, vK, vA, vLANE, vK, vA, vK))
        self("v_lshrrev_b32 v%d, 5, v%d\nv_and_b32 v%d, 31, v%d\nv_lshlrev_b32 v%d, 1, v%d\nv_xor_b32 v%d, v%d, v%d" % (vA, vLANE, vB, vLANE, vC, vA, vB, vB, vC))
        self("v_lshlrev_b32 v%d, 4, v%d\nv_lshl_add_u32 v%d, v%d, 9, v%d" % (vB, vB, vV0, vA, vB))
        self("v_xor_b32 v%d, 64, v%d\nv_xor_b32 v%d, 0x80, v%d\nv_xor_b32 v%d, 0xc0, v%d" % (vV0 + 1, vV0, vV0 + 2, vV0, vV0 + 3, vV0))
        if self.opt.get("stamps"): self("v_mov_b32 v%d, 0" % vST)
        self("s_sub_u32 s%d, s%d, 8\ns_lshl_b32 s%d, s%d, 3\ns_add_u32 s%d, s%d, s%d" % (sIDX, sD, sIDX, sIDX, sIDX, sIDX, sHKV))
        l = self.if_wave_eq(0)
        self("v_mov_b32 v%d, 0\nv_lshlrev_b32 v%d, 2, v%d\nv_add_u32 v%d, %d, v%d\nds_write_b32 v%d, v%d" % (vB, vA, vLANE, vA, FLG, vA, vA, vB))
        self.lab(l)
        self("s_waitcnt lgkmcnt(0)\ns_barrier")
        self("s_load_dword s%d, s[%d:%d], 0" % (sTAG, sWS, sWS + 1))
        if self.opt.get("stamps"):
            l = self.if_wave_eq(0)
            self("s_memrealtime s[%d:%d]\ns_waitcnt lgkmcnt(0)\nv_writelane_b32 v%d, s%d, 0" % (sM0, sM0 + 1, vST, sM0))
            self.lab(l)
            self.stamp(1)
        self.srd(srdK, sK, 0x10000000); self.srd(srdV, sV, 0x10000000); self.srd(srdWS, sWS, 0x40000000)
        self("s_cmp_lt_u32 s%d, 8\ns_cbranch_scc1 R_Q" % sD)
        self("s_cmp_lt_u32 s%d, 56\ns_cbranch_scc1 R_GU" % sIDX)
        self("s_cmp_lt_u32 s%d, 84\ns_cbranch_scc1 R_D" % sIDX)
        self("s_cmp_lt_u32 s%d, 148\ns_cbranch_scc1 R_WO" % sIDX)
        self("s_cmp_lt_u32 s%d, 176\ns_cbranch_scc1 R_R" % sIDX)
        self("s_branch R_N")
    def tag_ready(self):
        self("s_waitcnt lgkmcnt(0)\ns_add_u32 s%d, s%d, 1" % (sTAG, sTAG))
    def role_QGU(self):
        self.lab("R_Q")
        self("s_lshl_b32 s%d, s%d, 3\ns_add_u32 s%d, s%d, s%d" % (sIDX, sHKV, sIDX, sIDX, sD))
        self.srd(srdW, sWQ, 448 * 4096 * 2)
        self("s_mov_b32 s%d, 8192\ns_lshl_b32 s%d, s%d, 9\ns_add_u32 s%d, s%d, %d\ns_branch R_QGU" % (sSTRIDE, sDST, sIDX, sDST, sDST, QB))
        self.lab("R_GU")
        self.srd(srdW, sGATE, 448 * 1792 * 2)
        self("s_mov_b32 s%d, %d\ns_cmp_lt_u32 s%d, 28\ns_cbranch_scc1 L_isg" % (sDST, GB, sIDX))
        self("s_mov_b32 s%d, s%d\ns_mov_b32 s%d, s%d\ns_sub_u32 s%d, s%d, 28\ns_mov_b32 s%d, %d" % (srdW, sUP, srdW + 1, sUP + 1, sIDX, sIDX, sDST, UB))
        self.lab("L_isg")
        self("s_mov_b32 s%d, 3584\ns_lshl_b32 s%d, s%d, 9\ns_add_u32 s%d, s%d, s%d" % (sSTRIDE, sA, sIDX, sDST, sDST, sA))
        self.lab("R_QGU")
        self("s_cmp_ge_u32 s%d, 7\ns_cbranch_scc1 L_qgu_k" % sWAVE)
        self.srd(srdX, sX, 1792)
        XR = DD
        XA = DD + 12
        self("v_lshrrev_b32 v%d, 5, v%d\nv_mul_u32_u24 v%d, 896, v%d\nv_and_b32 v%d, 31, v%d\nv_lshl_add_u32 v%d, v%d, 5, v%d" % (vA, vLANE, vA, vA, vC, vLANE, vB, vC, vA))
        self("v_cmp_le_u32 vcc, 28, v%d\nv_mov_b32 v%d, 0x10000000\nv_cndmask_b32 v%d, v%d, v%d, vcc" % (vC, vC, vB, vB, vC))
        self("buffer_load_dwordx4 v[%d:%d], v%d, s[%d:%d], 0 offen\nbuffer_load_dwordx4 v[%d:%d], v%d, s[%d:%d], 0 offen offset:16" % (XR, XR + 3, vB, srdX, srdX + 3, XR + 4, XR + 7, vB, srdX, srdX + 3))
        self("v_bfe_u32 v%d, v%d, 1, 1\nv_mul_u32_u24 v%d, 896, v%d\nv_lshrrev_b32 v%d, 4, v%d\nv_lshl_add_u32 v%d, v%d, 5, v%d" % (vA, vLANE, vA, vA, vC, vLANE, vA, vC, vA))
        self("v_and_b32 v%d, 1, v%d\nv_lshl_add_u32 v%d, v%d, 4, v%d\ns_lshl_b32 s%d, s%d, 7" % (vC, vLANE, vA, vC, vA, sA, sWAVE))
        self("buffer_load_dwordx4 v[%d:%d], v%d, s[%d:%d], s%d offen" % (XA, XA + 3, vA, srdX, srdX + 3, sA))
        self("s_lshl_b32 s%d, s%d, 6\ns_mul_i32 s%d, s%d, s%d\ns_lshl_b32 s%d, s%d, 7\ns_add_u32 s%d, s%d, s%d" % (sA, sWAVE, sA, sA, sSTRIDE, sDOFF, sIDX, sDOFF, sDOFF, sA))
        self.duty_lane_addr()
        self.issue_duty()
        if self.opt.get("qbar", 1): self("s_barrier")
        self.prio(2)
        self.issue_K(0, self.opt.get("nk", 8))
        self.prio(3)
        self.stamp(2)
        FX = DD + 16
        nk = self.opt.get("nk", 8)
        self("s_waitcnt vmcnt(%d)" % (8 + nk))
        for i in range(8):
            self("v_lshlrev_b32 v%d, 16, v%d\nv_and_b32 v%d, 0xffff0000, v%d" % (FX + 2 * i, XR + i, FX + 2 * i + 1, XR + i))
        S = 116; T = 117; U2 = 118; W2 = 119
        self("v_add_f32 v%d, v%d, v%d\nv_add_f32 v%d, v%d, v%d\nv_add_f32 v%d, v%d, v%d\nv_add_f32 v%d, v%d, v%d" % (S, FX, FX + 1, T, FX + 2, FX + 3, U2, FX + 4, FX + 5, W2, FX + 6, FX + 7))
        for k, r in enumerate((S, T, U2, W2)): self("v_add_f32 v%d, v%d, v%d" % (r, r, FX + 8 + 2 * k))
        for k, r in enumerate((S, T, U2, W2)): self("v_add_f32 v%d, v%d, v%d" % (r, r, FX + 9 + 2 * k))
        self("v_add_f32 v%d, v%d, v%d\nv_add_f32 v%d, v%d, v%d\nv_add_f32 v%d, v%d, v%d" % (S, S, T, U2, U2, W2, S, S, U2))
        self.row_allreduce([S], "v_add_f32"); self.cross16([S], [T], "v_add_f32")
        self("v_mul_f32 v%d, 0x%x, v%d" % (S, f2u(1.0 / 448), S))
        for i in range(16): self("v_sub_f32 v%d, v%d, v%d" % (FX + i, FX + i, S))
        self("v_mul_f32 v%d, v%d, v%d\nv_mul_f32 v%d, v%d, v%d\nv_mul_f32 v%d, v%d, v%d\nv_mul_f32 v%d, v%d, v%d" % (T, FX, FX, U2, FX + 1, FX + 1, W2, FX + 2, FX + 2, vE, FX + 3, FX + 3))
        for i in range(4, 16): self("v_fmac_f32 v%d, v%d, v%d" % ((T, U2, W2, vE)[i % 4], FX + i, FX + i))
        self("v_add_f32 v%d, v%d, v%d\nv_add_f32 v%d, v%d, v%d\nv_add_f32 v%d, v%d, v%d" % (T, T, U2, W2, W2, vE, T, T, W2))
        self.smask(sM0, 0x0FFFFFFF0FFFFFFF)
        self("v_cndmask_b32 v%d, 0, v%d, s[%d:%d]" % (T, T, sM0, sM0 + 1))
        self.row_allreduce([T], "v_add_f32"); self.cross16([T], [U2], "v_add_f32")
        self("v_mul_f32 v%d, 0x%x, v%d" % (T, f2u(1.0 / 448), T))
        self.bf16r(S, S); self.bf16r(T, T)
        self("v_add_f32 v%d, 0x%x, v%d" % (T, f2u(1e-5), T))
        self.bf16r(T, T)
        self("v_sqrt_f32 v%d, v%d" % (T, T))
        self.bf16r(T, T)
        self("v_mov_b32 v%d, v%d\nv_mov_b32 v%d, v%d" % (U2, S, W2, T))
        self("v_permlane32_swap_b32 v%d, v%d\nv_permlane32_swap_b32 v%d, v%d" % (S, U2, T, W2))
        self.smask(sM0, 0xCCCCCCCCCCCCCCCC)
        self("v_cndmask_b32 v%d, v%d, v%d, s[%d:%d]\nv_cndmask_b32 v%d, v%d, v%d, s[%d:%d]" % (S, S, U2, sM0, sM0 + 1, T, T, W2, sM0, sM0 + 1))
        self("v_rcp_f32 v%d, v%d" % (U2, T))
        E = FX
        for k in range(4): self("v_lshlrev_b32 v%d, 16, v%d\nv_and_b32 v%d, 0xffff0000, v%d" % (E + 2 * k, XA + k, E + 2 * k + 1, XA + k))
        for k in range(8): self("v_sub_f32 v%d, v%d, v%d" % (E + k, E + k, S))
        for k in range(4): self("v_cvt_pk_bf16_f32 v%d, v%d, v%d" % (XA + k, E + 2 * k, E + 2 * k + 1))
        for k in range(4): self("v_lshlrev_b32 v%d, 16, v%d\nv_and_b32 v%d, 0xffff0000, v%d" % (E + 2 * k, XA + k, E + 2 * k + 1, XA + k))
        for k in range(8): self("v_mul_f32 v%d, v%d, v%d" % (E + 8 + k, E + k, U2))
        for k in range(8): self("v_fma_f32 v%d, -v%d, v%d, v%d" % (XR + k, E + 8 + k, T, E + k))
        for k in range(8): self("v_fmac_f32 v%d, v%d, v%d" % (E + 8 + k, XR + k, U2))
        AFq = ACC
        for k in range(4): self("v_cvt_pk_bf16_f32 v%d, v%d, v%d" % (AFq + k, E + 8 + 2 * k, E + 9 + 2 * k))
        self("v_bfe_u32 v%d, v%d, 3, 1\nv_lshlrev_b32 v%d, 8, v%d\nv_and_b32 v%d, 7, v%d\nv_lshl_add_u32 v%d, v%d, 5, v%d\nv_lshrrev_b32 v%d, 4, v%d\nv_lshl_add_u32 v%d, v%d, 3, v%d"
             % (vF, vLANE, vF, vF, vG, vLANE, vF, vG, vF, vG, vLANE, vF, vG, vF))
        self("s_lshl_b32 s%d, s%d, 9\ns_add_u32 s%d, s%d, %d\nv_add_u32 v%d, s%d, v%d" % (sA, sWAVE, sA, sA, RED, vF, sA, vF))
        self("s_waitcnt vmcnt(%d)" % nk)
        self.stamp(11)
        self.duty_perm(DD)
        self.duty_mfma(AFq, DD, GR)
        self("v_mov_b32 v%d, v%d" % (GR + 1, GR + 2))
        self("ds_write_b64 v%d, v[%d:%d]" % (vF, GR, GR + 1))
        self.tag_ready()
        self("s_lshl_b32 s%d, s%d, 2\ns_add_u32 s%d, s%d, %d\nv_mov_b32 v%d, s%d\nv_mov_b32 v%d, 1" % (sA, sWAVE, sA, sA, FLG, vF, sA, vG))
        self.execm(1)
        self("ds_write_b32 v%d, v%d" % (vF, vG))
        self.execm(-1)
        l = self.if_wave_eq(0)
        lp = self.nl("L_flg"); dn = self.nl("L_flgd")
        self("v_min_u32 v%d, 6, v%d\nv_lshlrev_b32 v%d, 2, v%d\nv_add_u32 v%d, %d, v%d" % (vF, vLANE, vF, vF, vF, FLG, vF))
        self("s_mov_b32 s%d, %d" % (sLOOP, 200000))
        self.lab(lp)
        self("ds_read_b32 v%d, v%d\ns_waitcnt lgkmcnt(0)\nv_cmp_ne_u32 vcc, 1, v%d\ns_cbranch_vccz %s" % (vG, vF, vG, dn))
        self("s_sub_u32 s%d, s%d, 1\ns_cmp_lg_u32 s%d, 0\ns_cbranch_scc1 %s" % (sLOOP, sLOOP, sLOOP, lp))
        self.lab(dn)
        self("v_lshlrev_b32 v%d, 3, v%d\nv_add_u32 v%d, %d, v%d" % (vG, vLANE, vF, RED, vG))
        for k in range(7): self("ds_read_b64 v[%d:%d], v%d offset:%d" % (DD + 2 * k, DD + 2 * k + 1, vF, k * 512))
        self("s_waitcnt lgkmcnt(0)")
        for (d, s_) in ((0, 2), (4, 6), (8, 10), (0, 4), (8, 12), (0, 8)):
            self("v_add_f32 v%d, v%d, v%d\nv_add_f32 v%d, v%d, v%d" % (DD + d, DD + d, DD + s_, DD + d + 1, DD + d + 1, DD + s_ + 1))
        self("v_cvt_pk_bf16_f32 v%d, v%d, v%d\nv_mov_b32 v%d, s%d" % (GR, DD, DD + 1, GR + 1, sTAG))
        self("buffer_store_dwordx2 v[%d:%d], v%d, s[%d:%d], s%d offen sc1" % (GR, GR + 1, vG, srdWS, srdWS + 3, sDST))
        self.lab(l)
        self.stamp(8)
        if nk < 8:
            self.prio(2)
            self.issue_K(nk, 8)
        self.code_prefetch("QGU")
        self("s_branch L_qgu_j")
        self.lab("L_qgu_k")
        if self.opt.get("qbar", 1): self("s_barrier")
        self.prio(2)
        self.issue_K()
        self.code_prefetch("QGU")
        self.tag_ready()
        self.lab("L_qgu_j")
        self.att_prep()
        self.issue_V()
        self.att_q(); self.att_qk(); self.att_pv()
        self.finish("QGU")
    def role_D(self):
        self.lab("R_D")
        self("s_sub_u32 s%d, s%d, 56" % (sIDX, sIDX))
        self.srd(srdW, sDOWN, 1792 * 448 * 2)
        self.issue_K()
        self.code_prefetch("D")
        self.rowblock_setup()
        self.att_prep()
        self.afrag_off(vA, GU, 7)
        self.pub_addr(vB, FB, 28 * 256, sP2)
        self("s_lshr_b32 s%d, s%d, 3\ns_mul_i32 s%d, s%d, %d\ns_lshl_b32 s%d, s%d, 9\ns_add_u32 s%d, s%d, s%d\ns_and_b32 s%d, s%d, 7\ns_lshl_b32 s%d, s%d, 6\ns_add_u32 s%d, s%d, s%d\ns_add_u32 s%d, s%d, %d"
             % (sA, sWAVE, sA, sA, UB - GB, sBt, sIDX, sA, sA, sBt, sBt, sWAVE, sBt, sBt, sA, sA, sBt, sP1, sA, GB))
        self("s_lshl_b32 s%d, s%d, 5\ns_add_u32 s%d, s%d, %d\nv_lshl_add_u32 v%d, v%d, 2, s%d" % (sDST, sWAVE, sDST, sDST, GU, vC, vLANE, sDST))
        self.issue_V()
        self.stamp(2)
        self.tag_ready()
        self.poll_scalar(1, sP1)
        self.scalars_to_lds(8, vC)
        self.att_q()
        self.att_qk(late_duty=True); self.att_pv(late_duty=True)
        l = self.if_wave_lt(7)
        Gr = DD; Ur = DD + 4; H = DD + 8
        self("ds_read_b128 v[%d:%d], v%d\nds_read_b128 v[%d:%d], v%d offset:256" % (Gr, Gr + 3, vA, Ur, Ur + 3, vA))
        self("s_waitcnt lgkmcnt(0)")
        for k in range(4):
            self("v_lshlrev_b32 v%d, 16, v%d\nv_and_b32 v%d, 0xffff0000, v%d\nv_lshlrev_b32 v%d, 16, v%d\nv_and_b32 v%d, 0xffff0000, v%d" % (H + 2 * k, Gr + k, H + 2 * k + 1, Gr + k, H + 8 + 2 * k, Ur + k, H + 9 + 2 * k, Ur + k))
        for k in range(8): self("v_mul_f32 v%d, v%d, v%d" % (H + k, H + k, H + 8 + k))
        for k in range(4): self("v_cvt_pk_bf16_f32 v%d, v%d, v%d" % (ACC + k, H + 2 * k, H + 2 * k + 1))
        self("v_mov_b32 v%d, s%d\nv_mov_b32 v%d, s%d" % (GR + 1, sTAG, GR + 3, sTAG))
        self("s_waitcnt vmcnt(%d)" % (0 if self.opt.get("dlate", 0) else 1))
        self.duty_perm(KR)
        self.duty_mfma(ACC, KR, GR)
        self("buffer_store_dwordx4 v[%d:%d], v%d, s[%d:%d], s%d offen sc1" % (GR, GR + 3, vB, srdWS, srdWS + 3, sP2))
        self.lab(l)
        self.stamp(8)
        self.finish("D")
    def role_WO(self):
        self.lab("R_WO")
        self("s_sub_u32 s%d, s%d, 84" % (sIDX, sIDX))
        self.srd(srdW, sWO, 4096 * 448 * 2)
        self.issue_K()
        self.code_prefetch("WO")
        self.rowblock_setup()
        self.att_prep()
        hO, hM, hW, hAF, hP = vA, vB, vC, vF, vG
        self.afrag_off(hAF, OA, 7)
        self.pub_addr(hP, SB, 64 * 256, sP3)
        self("v_and_b32 v%d, 15, v%d\nv_lshrrev_b32 v%d, 4, v%d\nv_lshlrev_b32 v%d, 4, v%d\nv_lshl_add_u32 v%d, v%d, 9, v%d"
             % (vH, vLANE, vI, vLANE, vE, vI, hO, vH, vE))
        self("s_and_b32 s%d, s%d, 1\ns_lshr_b32 s%d, s%d, 1" % (sC, sWAVE, sDST, sWAVE))
        self("s_lshl_b32 s%d, s%d, 14\ns_lshl_b32 s%d, s%d, 13\ns_add_u32 s%d, s%d, s%d\ns_lshl_b32 s%d, s%d, 6\ns_add_u32 s%d, s%d, s%d\ns_add_u32 s%d, s%d, %d"
             % (sP1, sIDX, sA, sC, sP1, sP1, sA, sA, sDST, sP1, sP1, sA, sP1, sP1, OB))
        self("s_lshl_b32 s%d, s%d, 7\ns_lshl_b32 s%d, s%d, 4\ns_add_u32 s%d, s%d, s%d\ns_add_u32 s%d, s%d, %d\nv_lshl_add_u32 v%d, v%d, 2, s%d"
             % (sA, sC, sBt, sDST, sA, sA, sBt, sA, sA, OA, hW, vI, sA))
        self.issue_V()
        self.stamp(2)
        self.tag_ready()
        self.att_q(); self.att_qk(late_duty=True); self.att_pv(late_duty=True)
        OD = DD
        ldO = "buffer_load_dwordx4 v[%d:%d], v%d, s[%d:%d], s%d offen sc1" % (OD, OD + 3, hO, srdWS, srdWS + 3, sP1)
        self(ldO)
        l = self.if_wave_lt(7)
        self("s_waitcnt vmcnt(1)")
        self.duty_perm(KR)
        self.lab(l)
        self.masked_poll(ldO, [OD + 3], 0)
        self.stamp(9)
        Mm = DD + 4; Ll = DD + 5; Mx = DD + 8; Wt = DD + 9
        self("v_mov_b32 v%d, v%d\nv_mov_b32 v%d, v%d" % (Mm, OD + 2, Ll, OD + 2))
        self("v_permlane16_swap_b32 v%d, v%d" % (Mm, Ll))
        self("v_max_f32_dpp v%d, v%d, v%d row_ror:8 %s" % (Mx, Mm, Mm, DPPALL))
        self.row_allreduce([Mx], "v_max_f32", (4, 2, 1))
        self("v_sub_f32 v%d, v%d, v%d\nv_mul_f32 v%d, 0x%x, v%d\nv_exp_f32 v%d, v%d" % (Wt, Mm, Mx, Wt, C_EXP, Wt, Wt, Wt))
        self("v_mul_f32 v%d, v%d, v%d\nv_mul_f32 v%d, v%d, v%d\nv_mul_f32 v%d, v%d, v%d" % (Ll, Ll, Wt, OD, OD, Wt, OD + 1, OD + 1, Wt))
        self.row_allreduce([Ll, OD, OD + 1], "v_add_f32")
        self("v_rcp_f32 v%d, v%d\nv_mul_f32 v%d, v%d, v%d\nv_mul_f32 v%d, v%d, v%d" % (Ll, Ll, OD, OD, Ll, OD + 2, OD + 1, Ll))
        self("v_cvt_pk_bf16_f32 v%d, v%d, v%d" % (OD + 1, OD, OD + 2))
        self.execm(0x0001000100010001)
        self("ds_write_b32 v%d, v%d" % (hW, OD + 1))
        self.execm(-1)
        self("v_mov_b32 v%d, s%d\nv_mov_b32 v%d, s%d" % (GR + 1, sTAG, GR + 3, sTAG))
        self("s_waitcnt lgkmcnt(0)\ns_barrier")
        self.stamp(12)
        l = self.if_wave_lt(7)
        self("ds_read_b128 v[%d:%d], v%d\ns_waitcnt lgkmcnt(0)" % (ACC, ACC + 3, hAF))
        self.duty_mfma(ACC, KR, GR)
        self("buffer_store_dwordx4 v[%d:%d], v%d, s[%d:%d], s%d offen sc1" % (GR, GR + 3, hP, srdWS, srdWS + 3, sP3))
        self.lab(l)
        self.stamp(10)
        self.finish("WO")
    def role_R(self):
        self.lab("R_R")
        self("s_sub_u32 s%d, s%d, 148" % (sIDX, sIDX))
        self.srd(srdX, sX, 1792); self.srd(srdOUT, sOUT, 1792)
        self.issue_K()
        self.code_prefetch("R")
        self.att_prep()
        XV = 56; VO = 57; GS = 58; aRSW = 59; aRSR = 60
        self("v_bfe_u32 v%d, v%d, 4, 1\nv_mul_u32_u24 v%d, 896, v%d\nv_and_b32 v%d, 15, v%d\nv_lshl_add_u32 v%d, v%d, 1, v%d\ns_lshl_b32 s%d, s%d, 5\nv_add_u32 v%d, s%d, v%d"
             % (VO, vLANE, VO, VO, vF, vLANE, VO, vF, VO, sA, sIDX, VO, sA, VO))
        self("s_lshl_b32 s%d, s%d, 7\ns_add_u32 s%d, s%d, %d\nv_lshl_add_u32 v%d, v%d, 3, s%d" % (sA, sWAVE, sA, sA, RS, aRSW, vLANE, sA))
        self("v_and_b32 v%d, 31, v%d\nv_lshlrev_b32 v%d, 2, v%d\nv_lshrrev_b32 v%d, 5, v%d\nv_lshl_add_u32 v%d, v%d, 10, v%d\nv_add_u32 v%d, %d, v%d" % (vF, vLANE, vF, vF, vG, vLANE, aRSR, vG, vF, aRSR, RS, aRSR))
        self("s_mul_i32 s%d, s%d, %d\ns_lshl_b32 s%d, s%d, 10\ns_add_u32 s%d, s%d, s%d\ns_add_u32 s%d, s%d, %d" % (sP1, sIDX, 28 * 256, sA, sWAVE, sP1, sP1, sA, sP1, sP1, FB))
        self("s_lshl_b32 s%d, s%d, 14\ns_add_u32 s%d, s%d, s%d\ns_add_u32 s%d, s%d, %d" % (sP2, sIDX, sP2, sP2, sA, sP2, sP2, SB))
        self.issue_V()
        self.stamp(2)
        self.tag_ready()
        self.att_q(); self.att_qk(); self.att_pv()
        self("buffer_load_ushort v%d, v%d, s[%d:%d], 0 offen" % (XV, VO, srdX, srdX + 3))
        ldF = "buffer_load_dwordx4 v[%d:%d], v%d, s[%d:%d], s%d offen sc1" % (DD, DD + 3, vL16, srdWS, srdWS + 3, sP1)
        ldS = "buffer_load_dwordx4 v[%d:%d], v%d, s[%d:%d], s%d offen sc1" % (DD + 8, DD + 11, vL16, srdWS, srdWS + 3, sP2)
        l = self.if_wave_lt(7)
        self(ldF)
        self.masked_poll(ldF, [DD + 1, DD + 3], 0)
        self.cross16([DD, DD + 2], [DD + 4, DD + 5], "v_add_f32"); self.cross32([DD, DD + 2], [DD + 4, DD + 5], "v_add_f32")
        self("v_mov_b32 v%d, v%d" % (DD + 1, DD + 2))
        self.execm(0xFFFF)
        self("ds_write_b64 v%d, v[%d:%d] offset:2048" % (aRSW, DD, DD + 1))
        self.execm(-1)
        self.lab(l)
        self("s_waitcnt lgkmcnt(0)\ns_barrier")
        self(ldS)
        l = self.if_wave_eq(0)
        self("v_and_b32 v%d, 31, v%d\nv_lshlrev_b32 v%d, 2, v%d\nv_add_u32 v%d, %d, v%d" % (vF, vLANE, vF, vF, vF, RSF, vF))
        F = DD + 16
        for w in range(7): self("ds_read_b32 v%d, v%d offset:%d" % (F + w, vF, w * 128))
        self("s_waitcnt lgkmcnt(0)")
        self("v_add_f32 v%d, v%d, v%d\nv_add_f32 v%d, v%d, v%d\nv_add_f32 v%d, v%d, v%d\nv_add_f32 v%d, v%d, v%d\nv_add_f32 v%d, v%d, v%d\nv_add_f32 v%d, v%d, v%d"
             % (F, F, F + 1, F + 2, F + 2, F + 3, F + 4, F + 4, F + 5, F, F, F + 2, F + 4, F + 4, F + 6, F, F, F + 4))
        self.bf16r(F, F)
        self("v_mul_f32 v%d, 0x%x, v%d\nv_exp_f32 v%d, v%d\nv_add_f32 v%d, 1.0, v%d\nv_rcp_f32 v%d, v%d\nv_mul_f32 v%d, v%d, v%d" % (F + 1, f2u(-LOG2E), F, F + 1, F + 1, F + 1, F + 1, F + 1, F + 1, F, F, F + 1))
        self.bf16r(GS, F)
        self.lab(l)
        self.stamp(9)
        S0 = DD + 8
        self.masked_poll(ldS, [S0 + 1, S0 + 3], 0)
        self.stamp(10)
        self.cross16([S0, S0 + 2], [DD + 4, DD + 5], "v_add_f32"); self.cross32([S0, S0 + 2], [DD + 4, DD + 5], "v_add_f32")
        self("v_mov_b32 v%d, v%d" % (S0 + 1, S0 + 2))
        self.execm(0xFFFF)
        self("ds_write_b64 v%d, v[%d:%d]" % (aRSW, S0, S0 + 1))
        self.execm(-1)
        self("s_waitcnt lgkmcnt(0)\ns_barrier")
        self.stamp(12)
        l = self.if_wave_eq(0)
        for w in range(8): self("ds_read_b32 v%d, v%d offset:%d" % (DD + w, aRSR, w * 128))
        self("v_lshlrev_b32 v%d, 16, v%d" % (XV, XV))
        self("s_waitcnt lgkmcnt(0)")
        for st in (4, 2, 1):
            for k in range(st): self("v_add_f32 v%d, v%d, v%d" % (DD + k, DD + k, DD + k + st))
        self.cross32([DD], [DD + 1], "v_add_f32")
        self.bf16r(DD, DD)
        self("v_mul_f32 v%d, v%d, v%d" % (DD, DD, GS))
        self.bf16r(DD, DD)
        self("v_add_f32 v%d, v%d, v%d\nv_cvt_pk_bf16_f32 v%d, v%d, v%d" % (DD, XV, DD, DD, DD, DD))
        self.execm(0xFFFFFFFF)
        self("buffer_store_short v%d, v%d, s[%d:%d], 0 offen" % (DD, VO, srdOUT, srdOUT + 3))
        self.execm(-1)
        l2 = self.nl("L_noep")
        self("s_cmp_lg_u32 s%d, 0\ns_cbranch_scc1 %s" % (sIDX, l2))
        self("v_mov_b32 v%d, s%d\nv_mov_b32 v%d, 0" % (vF, sTAG, vG))
        self.execm(1)
        self("buffer_store_dword v%d, v%d, s[%d:%d], 0 offen sc1" % (vF, vG, srdWS, srdWS + 3))
        self.execm(-1)
        self.lab(l2)
        self.lab(l)
        self.finish("R")
    def role_N(self):
        self.lab("R_N")
        self.issue_K()
        self.code_prefetch("N")
        self.att_prep()
        self.issue_V()
        self.stamp(2)
        self.tag_ready()
        self.att_q(); self.att_qk(); self.att_pv()
        self.finish("N")

def gen(**opt):
    g = G(opt)
    g.prologue()
    g.role_N(); g.role_R(); g.role_WO(); g.role_D(); g.role_QGU()
    g.lab("L_exit")
    g("s_endpgm")
    lines = hazard.resolve(g.a.lines)
    return wrap("\n".join(lines) + "\n", (256, 1, 1), (1024, 1, 1), LDS_BYTES, vgpr=128)
OFMT16 = True
if __name__ == "__main__":
    import argparse
    p = argparse.ArgumentParser()
    p.add_argument("-o", default="recurrent_scan__sliding_block_cached__glu_gated_bilinear__decode.s")
    p.add_argument("--stamps", type=int, default=0)
    p.add_argument("--opt", default="")
    x = p.parse_args()
    opt = dict(stamps=x.stamps)
    for kv in x.opt.split(","):
        if kv: k, v = kv.split("="); opt[k] = int(v)
    open(x.o, "w").write(gen(**opt))
    print("written", x.o)

OFMT16 = True
```

```python
import sys, struct
from asmlib import *
import hazard

EPOCH = 0
XT = 1024
QB = 4096; GB = 36864; UB = 51200; FB = 73728; SB = 274432; OB = 1048576
STAMPA = 8 << 20
QS = 131072; PS = 132096; MX = 133120; LS = 133248; GU = 133376; OA = 133888
RS = 134400; RSF = RS + 2048; RED = 138496; FLG = RED + 4096
C_S1 = FLG + 32; C_S2 = FLG + 36; C_SP = FLG + 40; C_LOC = FLG + 44; C_V1 = FLG + 48
LDS_BYTES = 163840
LOG2E = 1.4426950408889634
def f2u(x): return struct.unpack("<I", struct.pack("<f", x))[0]
C_EXP = f2u(LOG2E / 16.0)
OFMT16 = True
ROLEMAP = 4

sWAVE = 3
sX, sK, sV, sWQ, sWO, sGATE, sUP = 4, 6, 8, 10, 12, 16, 18
sDOWN, sOUT, sWS = 20, 22, 26
srdS, srdW, srdWS, srdX, srdOUT = 28, 32, 36, 40, 44
sTAG = 48; sHKV = 49; sD = 50; sROLE = 51; sIDX = 52; sKVOFF = 53
sA = 54; sBt = 55; sC = 56; sLOOP = 57; sSTRIDE = 58; sDST = 59; sDOFF = 60; sOPUB = 61; sQPOLL = 62; sLOCAL = 63
sP0 = 64
sSELLO = 96; sSELHI = 97; sM0 = 98; sP1 = 100; sP2 = 101; sP3 = 14; sP4 = 15; sDW = 24; sROT = 95; sVW = 25
R_Q, R_GU, R_D, R_WO, R_R, R_N = 0, 1, 2, 3, 4, 5

vLANE = 1; vK = 2; vV0 = 3
aQW = 2; aQA, aMXW, aMXR, aPS = 3, 4, 5, 6
vA = 7; vB = 8; vC = 9; vDo = 10; vE = 11; vF = 12; vG = 13; vH = 14; vI = 15
KR = 16; RAW = 48; DD = 80; ACC = 112; GR = 116; vL16 = 126; vST = 127
aT1, aT2, aOP, aPA, aML, aPS2 = 120, 121, 122, 123, 124, 125
DPPALL = "row_mask:0xf bank_mask:0xf"

class G:
    def __init__(self, opt):
        self.a = Asm(); self.opt = opt
    def __call__(self, s): self.a(s)
    def lab(self, n): self.a.label(n)
    def nl(self, p): return self.a.newlabel(p)
    def stamp(self, k, wave=0):
        if not self.opt.get("stamps"): return
        if self.opt.get("minst") and k not in (1, 6, 7, 15): return
        l = self.nl("L_st")
        self("s_cmp_lg_u32 s%d, %d\ns_cbranch_scc1 %s" % (sWAVE, wave, l))
        self("s_memtime s[%d:%d]\ns_waitcnt lgkmcnt(0)\nv_writelane_b32 v%d, s%d, %d" % (sM0, sM0 + 1, vST, sM0, k))
        self.lab(l)
    def srd(self, d, p, size):
        self("s_mov_b32 s%d, s%d\ns_mov_b32 s%d, s%d\ns_mov_b32 s%d, 0x%x\ns_mov_b32 s%d, 0x20000" % (d, p, d + 1, p + 1, d + 2, size, d + 3))
    def execm(self, mask):
        if mask == -1: self("s_mov_b64 exec, -1")
        elif mask <= 64: self("s_mov_b64 exec, %d" % mask)
        elif mask < (1 << 32): self("s_mov_b32 exec_lo, 0x%x\ns_mov_b32 exec_hi, 0" % mask)
        else: self("s_mov_b32 exec_lo, 0x%x\ns_mov_b32 exec_hi, 0x%x" % (mask & 0xffffffff, mask >> 32))
    def smask(self, s, mask):
        self("s_mov_b32 s%d, 0x%x\ns_mov_b32 s%d, 0x%x" % (s, mask & 0xffffffff, s + 1, mask >> 32))
    def row_allreduce(self, regs, op, steps=(8, 4, 2, 1)):
        for st in steps:
            for r in regs: self("%s_dpp v%d, v%d, v%d row_ror:%d %s" % (op, r, r, r, st, DPPALL))
    def cross16(self, regs, tmps, op):
        for r, t in zip(regs, tmps): self("v_mov_b32 v%d, v%d" % (t, r))
        for r, t in zip(regs, tmps): self("v_permlane16_swap_b32 v%d, v%d" % (r, t))
        for r, t in zip(regs, tmps): self("%s v%d, v%d, v%d" % (op, r, r, t))
    def cross32(self, regs, tmps, op):
        for r, t in zip(regs, tmps): self("v_mov_b32 v%d, v%d" % (t, r))
        for r, t in zip(regs, tmps): self("v_permlane32_swap_b32 v%d, v%d" % (r, t))
        for r, t in zip(regs, tmps): self("%s v%d, v%d, v%d" % (op, r, r, t))
    def bf16r(self, d, s):
        self("v_cvt_pk_bf16_f32 v%d, v%d, v%d\nv_lshlrev_b32 v%d, 16, v%d" % (d, s, s, d, d))
    def prio(self, p):
        if self.opt.get("prio", 1): self("s_setprio %d" % p)
    def if_cmp(self, cond, reg, val):
        inv = {"eq": "lg", "lg": "eq", "lt": "ge", "ge": "lt"}[cond]
        l = self.nl("L_if")
        self("s_cmp_%s_u32 s%d, %d\ns_cbranch_scc1 %s" % (inv, reg, val, l))
        return l
    def arrive(self, cnt):
        self("s_waitcnt lgkmcnt(0)\nv_mov_b32 v%d, %d\nv_mov_b32 v%d, 1" % (vE, cnt, vH))
        self.execm(1)
        self("ds_add_u32 v%d, v%d" % (vE, vH))
        self.execm(-1)
    def swait(self, cnt, target):
        lp = self.nl("L_sw"); dn = self.nl("L_swd")
        self("v_mov_b32 v%d, %d\ns_mov_b32 s%d, 1000000" % (vE, cnt, sLOOP))
        self.lab(lp)
        self("ds_read_b32 v%d, v%d\ns_waitcnt lgkmcnt(0)\nv_cmp_gt_u32 vcc, %d, v%d\ns_cbranch_vccz %s" % (vH, vE, target, vH, dn))
        self("s_sub_u32 s%d, s%d, 1\ns_cmp_lg_u32 s%d, 0\ns_cbranch_scc1 %s" % (sLOOP, sLOOP, sLOOP, lp))
        self.lab(dn)
    def code_prefetch(self, junk):
        self("s_getpc_b64 s[%d:%d]" % (sM0, sM0 + 1))
        pc = self.nl("L_pc")
        self.lab(pc)
        self("s_sub_u32 s%d, s%d, %s-L_kstart\ns_subb_u32 s%d, s%d, 0" % (sM0, sM0, pc, sM0 + 1, sM0 + 1))
        self("s_lshl_b32 s%d, s%d, 10" % (sA, sWAVE))
        self("v_add_u32 v%d, s%d, v%d" % (vE, sA, vL16))
        self("v_min_u32 v%d, L_exit-L_kstart-16, v%d" % (vE, vE))
        self("global_load_dwordx4 v[%d:%d], v%d, s[%d:%d]" % (junk, junk + 3, vE, sM0, sM0 + 1))
    def issue_duty(self):
        self("s_mov_b32 s%d, s%d" % (sA, sDOFF))
        for i in range(8):
            self("buffer_load_dwordx4 v[%d:%d], v%d, s[%d:%d], s%d offen nt" % (RAW + 4 * i, RAW + 4 * i + 3, vDo, srdW, srdW + 3, sA))
            if i < 7: self("s_add_u32 s%d, s%d, s%d" % (sA, sA, sSTRIDE))
    def duty_lane_addr(self):
        self("v_lshrrev_b32 v%d, 3, v%d\nv_and_b32 v%d, 7, v%d\nv_lshlrev_b32 v%d, 4, v%d" % (vE, vLANE, vDo, vLANE, vDo, vDo))
        self("s_lshl_b32 s%d, s%d, 3\nv_mul_u32_u24 v%d, s%d, v%d\nv_add_u32 v%d, v%d, v%d" % (sA, sSTRIDE, vE, sA, vE, vDo, vDo, vE))
    def duty_perm(self, BF):
        self("s_mov_b32 s%d, 0x05040100\ns_mov_b32 s%d, 0x07060302" % (sSELLO, sSELHI))
        for e in range(8):
            sel = sSELHI if e & 1 else sSELLO
            for p in range(4):
                self("v_perm_b32 v%d, v%d, v%d, s%d" % (BF + 4 * e + p, RAW + 4 * (2 * p + 1) + (e >> 1), RAW + 4 * (2 * p) + (e >> 1), sel))
    def duty_mfma(self, AFr, BF, X):
        D = RAW
        for e in range(8):
            self("v_mfma_f32_16x16x32_bf16 v[%d:%d], v[%d:%d], v[%d:%d], 0" % (D + 4 * e, D + 4 * e + 3, AFr, AFr + 3, BF + 4 * e, BF + 4 * e + 3))
        Y0, Y2, Z0, Z2 = X, X + 2, vH, vI
        for gp in range(4):
            rm = 1 << gp
            e0, e1 = 2 * gp, 2 * gp + 1
            self("v_add_f32_dpp v%d, v%d, v%d row_ror:8 row_mask:0x%x bank_mask:0x3" % (Y0, D + 4 * e0 + 1, D + 4 * e0, rm))
            self("v_add_f32_dpp v%d, v%d, v%d row_ror:8 row_mask:0x%x bank_mask:0x3" % (Y2, D + 4 * e1 + 1, D + 4 * e1, rm))
            self("v_add_f32_dpp v%d, v%d, v%d row_ror:8 row_mask:0x%x bank_mask:0xc" % (Z0, D + 4 * e0 + 2, D + 4 * e0 + 3, rm))
            self("v_add_f32_dpp v%d, v%d, v%d row_ror:8 row_mask:0x%x bank_mask:0xc" % (Z2, D + 4 * e1 + 2, D + 4 * e1 + 3, rm))
        self("v_mov_b32_dpp v%d, v%d quad_perm:[0,1,2,3] row_mask:0xf bank_mask:0xc" % (Y0, Z0))
        self("v_mov_b32_dpp v%d, v%d quad_perm:[0,1,2,3] row_mask:0xf bank_mask:0xc" % (Y2, Z2))
    def poll_scalar(self, srcs):
        nbuf = len(srcs)
        lp = self.nl("L_ps"); dn = self.nl("L_pd")
        self("s_mov_b32 s%d, %d" % (sLOOP, self.opt.get("maxpoll", 20000)))
        self.lab(lp)
        for k, (so, im) in enumerate(srcs):
            self("s_load_dwordx16 s[%d:%d], s[%d:%d], s%d offset:%d glc" % (sP0 + 16 * k, sP0 + 16 * k + 15, sWS, sWS + 1, so, im))
        self("s_waitcnt lgkmcnt(0)")
        tags = [sP0 + 1 + 2 * i for i in range(8 * nbuf)]
        self("s_and_b32 s%d, s%d, s%d\ns_or_b32 s%d, s%d, s%d" % (sBt, tags[0], tags[1], sC, tags[0], tags[1]))
        for t in tags[2:]:
            self("s_and_b32 s%d, s%d, s%d\ns_or_b32 s%d, s%d, s%d" % (sBt, sBt, t, sC, sC, t))
        self("s_xor_b32 s%d, s%d, s%d\ns_xor_b32 s%d, s%d, s%d\ns_or_b32 s%d, s%d, s%d" % (sBt, sBt, sTAG, sC, sC, sTAG, sBt, sBt, sC))
        self("s_cbranch_scc0 %s" % dn)
        self("s_sleep %d" % self.opt.get("sleep", 2))
        self("s_sub_u32 s%d, s%d, 1\ns_cmp_lg_u32 s%d, 0\ns_cbranch_scc1 %s" % (sLOOP, sLOOP, sLOOP, lp))
        self.lab(dn)
    def scalars_to_lds(self, n, vaddr):
        for i in range(n):
            self("v_writelane_b32 v%d, s%d, %d" % (vE, sP0 + 2 * i, i))
        self.execm((1 << n) - 1)
        self("ds_write_b32 v%d, v%d" % (vaddr, vE))
        self.execm(-1)
    def masked_poll(self, load, tagregs, first_wait):
        if isinstance(load, list): load = "\n".join(load)
        lp = self.nl("L_mp"); dn = self.nl("L_mpd"); ck = self.nl("L_mpc")
        self("s_mov_b32 s%d, %d" % (sLOOP, self.opt.get("maxpoll", 20000)))
        self("s_waitcnt vmcnt(%d)\ns_branch %s" % (first_wait, ck))
        self.lab(lp)
        if self.opt.get("vsleep", 1): self("s_sleep %d" % self.opt.get("vsleep", 1))
        self(load)
        self("s_waitcnt vmcnt(0)")
        self.lab(ck)
        self("v_cmp_ne_u32 vcc, s%d, v%d" % (sTAG, tagregs[0]))
        if len(tagregs) > 1:
            self("v_cmp_ne_u32 s[%d:%d], s%d, v%d" % (sM0, sM0 + 1, sTAG, tagregs[1]))
            self("s_or_b64 vcc, vcc, s[%d:%d]" % (sM0, sM0 + 1))
            self("s_cbranch_scc0 %s" % dn)
        else:
            self("s_cbranch_vccz %s" % dn)
        self("s_mov_b64 exec, vcc")
        self("s_sub_u32 s%d, s%d, 1\ns_cmp_lg_u32 s%d, 0\ns_cbranch_scc1 %s" % (sLOOP, sLOOP, sLOOP, lp))
        self.lab(dn)
        self("s_mov_b64 exec, -1")
    def tag_ready(self):
        self("s_waitcnt lgkmcnt(0)\ns_add_u32 s%d, s%d, 1" % (sTAG, sTAG))

    def common_prep(self):
        L = vLANE; t0, t1, t2 = vE, vH, vI
        self("v_lshrrev_b32 v%d, 4, v%d\nv_and_b32 v%d, 1, v%d" % (t2, L, t1, L))
        self("v_lshlrev_b32 v%d, 9, v%d\nv_lshl_add_u32 v%d, v%d, 4, v%d\nv_add_u32 v%d, %d, v%d" % (t1, t1, t1, t2, t1, aPA, PS, t1))
        self("v_and_b32 v%d, 15, v%d\nv_lshlrev_b32 v%d, 3, v%d\nv_lshl_add_u32 v%d, v%d, 16, v%d" % (t0, L, t1, t0, aOP, t2, t1))
        self("v_and_b32 v%d, 7, v%d\nv_lshlrev_b32 v%d, 3, v%d\nv_and_b32 v%d, 1, v%d\nv_lshl_add_u32 v%d, v%d, 2, v%d\nv_add_u32 v%d, %d, v%d" % (t0, L, t0, t0, t2, t2, t0, t2, t0, aML, MX, t0))
        self("v_lshrrev_b32 v%d, 2, v%d\nv_and_b32 v%d, 7, v%d\nv_xor_b32 v%d, s%d, v%d\nv_lshlrev_b32 v%d, 5, v%d" % (t0, L, t2, t0, t2, sWAVE, t2, t2, t2))
        self("v_and_b32 v%d, 8, v%d\nv_cmp_eq_u32 vcc, 0, v%d" % (t1, t1, t1) if False else "v_lshl_add_u32 v%d, v%d, 9, v%d\nv_and_b32 v%d, 3, v%d" % (t0, t0, t2, t1, L))
        self("v_lshl_add_u32 v%d, v%d, 3, v%d\nv_add_u32 v%d, 0x10000, v%d" % (aT1, t1, t0, aT2, aT1))
        self("s_lshl_b32 s%d, s%d, 3\ns_lshr_b32 s%d, s%d, 2\ns_add_u32 s%d, s%d, s%d\ns_lshl_b32 s%d, s%d, 14" % (sA, sHKV, sBt, sWAVE, sA, sA, sBt, sA, sA))
        self("s_and_b32 s%d, s%d, 1\ns_lshl_b32 s%d, s%d, 13\ns_add_u32 s%d, s%d, s%d\ns_lshr_b32 s%d, s%d, 1\ns_lshl_b32 s%d, s%d, 9\ns_add_u32 s%d, s%d, s%d" % (sBt, sD, sBt, sBt, sA, sA, sBt, sBt, sD, sBt, sBt, sA, sA, sBt))
        self("s_and_b32 s%d, s%d, 3\ns_lshl_b32 s%d, s%d, 7\ns_add_u32 s%d, s%d, s%d\ns_add_u32 s%d, s%d, %d" % (sBt, sWAVE, sBt, sBt, sA, sA, sBt, sOPUB, sA, OB))
    def role_prep(self):
        lj = self.nl("L_rp")
        l = self.if_cmp("eq", sROLE, R_D)
        self.srd(srdW, sDOWN, 1792 * 448 * 2)
        self.rowblock_setup()
        self.afrag_off(vA, GU, 7)
        self.pub_addr(vB, FB, 28 * 256, sP2)
        self("s_branch %s" % lj)
        self.lab(l)
        l = self.if_cmp("eq", sROLE, R_WO)
        self.srd(srdW, sWO, 4096 * 448 * 2)
        self.rowblock_setup()
        hO, hW, hAF, hP = vA, vC, vF, vG
        self.afrag_off(hAF, OA, 7)
        self.pub_addr(hP, SB, 64 * 256, sP3)
        self("v_and_b32 v%d, 15, v%d\nv_lshrrev_b32 v%d, 4, v%d\nv_lshlrev_b32 v%d, 4, v%d\nv_lshl_add_u32 v%d, v%d, 9, v%d"
             % (vH, vLANE, vI, vLANE, vE, vI, hO, vH, vE))
        self("s_and_b32 s%d, s%d, 1\ns_lshr_b32 s%d, s%d, 1" % (sC, sWAVE, sDST, sWAVE))
        self("s_lshl_b32 s%d, s%d, 14\ns_lshl_b32 s%d, s%d, 13\ns_add_u32 s%d, s%d, s%d\ns_lshl_b32 s%d, s%d, 6\ns_add_u32 s%d, s%d, s%d\ns_add_u32 s%d, s%d, %d"
             % (sP1, sIDX, sA, sC, sP1, sP1, sA, sA, sDST, sP1, sP1, sA, sP1, sP1, OB))
        self("s_lshl_b32 s%d, s%d, 7\ns_lshl_b32 s%d, s%d, 4\ns_add_u32 s%d, s%d, s%d\ns_add_u32 s%d, s%d, %d\nv_lshl_add_u32 v%d, v%d, 2, s%d"
             % (sA, sC, sBt, sDST, sA, sA, sBt, sA, sA, OA, hW, vI, sA))
        self("s_branch %s" % lj)
        self.lab(l)
        l = self.if_cmp("eq", sROLE, R_R)
        self.srd(srdX, sX, 1792); self.srd(srdOUT, sOUT, 1792)
        VO, aRSW, aRSR = vA, vB, vC
        self("v_bfe_u32 v%d, v%d, 4, 1\nv_mul_u32_u24 v%d, 896, v%d\nv_and_b32 v%d, 15, v%d\nv_lshl_add_u32 v%d, v%d, 1, v%d\ns_lshl_b32 s%d, s%d, 5\nv_add_u32 v%d, s%d, v%d"
             % (VO, vLANE, VO, VO, vE, vLANE, VO, vE, VO, sA, sIDX, VO, sA, VO))
        self("s_lshl_b32 s%d, s%d, 7\ns_add_u32 s%d, s%d, %d\nv_lshl_add_u32 v%d, v%d, 3, s%d" % (sA, sWAVE, sA, sA, RS, aRSW, vLANE, sA))
        self("v_and_b32 v%d, 31, v%d\nv_lshlrev_b32 v%d, 2, v%d\nv_lshrrev_b32 v%d, 5, v%d\nv_lshl_add_u32 v%d, v%d, 9, v%d\nv_add_u32 v%d, %d, v%d" % (vE, vLANE, vE, vE, vH, vLANE, aRSR, vH, vE, aRSR, RS, aRSR))
        self("s_mul_i32 s%d, s%d, %d\ns_lshl_b32 s%d, s%d, 10\ns_add_u32 s%d, s%d, s%d\ns_add_u32 s%d, s%d, %d" % (sP1, sIDX, 28 * 256, sA, sWAVE, sP1, sP1, sA, sP1, sP1, FB))
        self("s_lshl_b32 s%d, s%d, 14\ns_lshl_b32 s%d, s%d, 11\ns_add_u32 s%d, s%d, s%d\ns_add_u32 s%d, s%d, %d" % (sP2, sIDX, sA, sWAVE, sP2, sP2, sA, sP2, sP2, SB))
        self.lab(l)
        self.lab(lj)
    def rowblock_setup(self):
        self("s_sub_u32 s%d, s%d, 8" % (sDW, sWAVE))
        self("s_mov_b32 s%d, 896\ns_mul_i32 s%d, s%d, 57344\ns_lshl_b32 s%d, s%d, 7\ns_add_u32 s%d, s%d, s%d" % (sSTRIDE, sDOFF, sIDX, sA, sDW, sDOFF, sDOFF, sA))
        self.duty_lane_addr()
    def afrag_off(self, v, base, bstride_shift):
        self("v_bfe_u32 v%d, v%d, 1, 1\nv_lshlrev_b32 v%d, %d, v%d\nv_lshrrev_b32 v%d, 4, v%d\nv_lshl_add_u32 v%d, v%d, 5, v%d" % (v, vLANE, v, bstride_shift, v, vE, vLANE, v, vE, v))
        self("v_and_b32 v%d, 1, v%d\nv_lshl_add_u32 v%d, v%d, 4, v%d\nv_add_u32 v%d, %d, v%d" % (vE, vLANE, v, vE, v, v, base, v))
    def pub_addr(self, v, base, strideR, sdst):
        self("v_bfe_u32 v%d, v%d, 1, 2\nv_mul_u32_u24 v%d, %d, v%d" % (v, vLANE, v, strideR, v))
        self("v_bfe_u32 v%d, v%d, 3, 1\nv_lshl_add_u32 v%d, v%d, 7, v%d" % (vE, vLANE, v, vE, v))
        self("v_and_b32 v%d, 1, v%d\nv_lshl_add_u32 v%d, v%d, 6, v%d" % (vE, vLANE, v, vE, v))
        self("v_lshrrev_b32 v%d, 4, v%d\nv_lshl_add_u32 v%d, v%d, 4, v%d" % (vE, vLANE, v, vE, v))
        self("s_mul_i32 s%d, s%d, %d\ns_lshl_b32 s%d, s%d, 8\ns_add_u32 s%d, s%d, s%d\ns_add_u32 s%d, s%d, %d" % (sA, sDW, 4 * strideR, sdst, sIDX, sdst, sdst, sA, sdst, sdst, base))
    def if_duty_wave(self):
        l = self.nl("L_dw")
        self("s_sub_u32 s%d, s%d, 8\ns_cmp_ge_u32 s%d, 7\ns_cbranch_scc1 %s" % (sA, sWAVE, sA, l))
        return l

    def prologue(self):
        self.lab("L_kstart")
        self("s_cmp_ge_u32 s2, 256\ns_cbranch_scc1 L_exit")
        self("s_load_dwordx16 s[4:19], s[0:1], 0\ns_load_dwordx8 s[20:27], s[0:1], 64")
        self("v_lshrrev_b32 v%d, 6, v0\nv_and_b32 v%d, 63, v0" % (vA, vLANE))
        self("s_and_b32 s%d, s2, 7\ns_lshr_b32 s%d, s2, 3" % (sHKV, sD))
        self("v_readfirstlane_b32 s%d, v%d" % (sWAVE, vA))
        self.prio(3)
        self("s_and_b32 s%d, s%d, 1\ns_lshl_b32 s%d, s%d, 3\ns_or_b32 s%d, s%d, s%d\ns_lshl_b32 s%d, s%d, 24" % (sA, sD, sA, sA, sA, sA, sHKV, sA, sA))
        self("s_lshr_b32 s%d, s%d, 1\ns_lshl_b32 s%d, s%d, 17\ns_add_u32 s%d, s%d, s%d" % (sBt, sD, sBt, sBt, sA, sA, sBt))
        self("s_and_b32 s%d, s%d, 7\ns_lshl_b32 s%d, s%d, 14\ns_add_u32 s%d, s%d, s%d\ns_add_u32 s%d, s%d, %d" % (sBt, sWAVE, sBt, sBt, sA, sA, sBt, sKVOFF, sA, 28672 * 512))
        if self.opt.get("brot"):
            self("s_lshr_b32 s%d, s%d, 1\ns_and_b32 s%d, s%d, 7\ns_lshl_b32 s%d, s%d, 14\ns_xor_b32 s%d, s%d, s%d" % (sA, sD, sA, sA, sA, sA, sKVOFF, sKVOFF, sA))
        self("v_lshlrev_b32 v%d, 4, v%d" % (vL16, vLANE))
        if self.opt.get("stamps"): self("v_mov_b32 v%d, 0" % vST)
        rot = self.opt.get("rot", 11)
        if rot == 1: self("s_add_u32 s%d, s%d, s%d\ns_add_u32 s%d, s%d, s%d\ns_and_b32 s%d, s%d, 15" % (sROT, sD, sHKV, sROT, sROT, sWAVE, sROT, sROT))
        elif rot == 2: self("s_add_u32 s%d, s%d, s%d\ns_and_b32 s%d, s%d, 15" % (sROT, sD, sWAVE, sROT, sROT))
        elif rot == 3: self("s_and_b32 s%d, s%d, 15" % (sROT, sD))
        elif rot == 4: self("s_lshr_b32 s%d, s%d, 1\ns_add_u32 s%d, s%d, s%d\ns_and_b32 s%d, s%d, 15" % (sROT, sD, sROT, sROT, sWAVE, sROT, sROT))
        elif rot == 5: self("s_lshr_b32 s%d, s%d, 1\ns_and_b32 s%d, s%d, 15" % (sROT, sD, sROT, sROT))
        elif rot == 6: self("s_mul_i32 s%d, s%d, 5\ns_add_u32 s%d, s%d, s%d\ns_and_b32 s%d, s%d, 15" % (sROT, sD, sROT, sROT, sWAVE, sROT, sROT))
        elif rot == 7: self("s_lshl_b32 s%d, s%d, 1\ns_add_u32 s%d, s%d, s%d\ns_add_u32 s%d, s%d, s%d\ns_and_b32 s%d, s%d, 15" % (sROT, sHKV, sROT, sROT, sD, sROT, sROT, sWAVE, sROT, sROT))
        elif rot == 8: self("s_lshr_b32 s%d, s%d, 1\ns_lshl_b32 s%d, s%d, 1\ns_add_u32 s%d, s%d, s%d\ns_and_b32 s%d, s%d, 15" % (sROT, sD, sA, sHKV, sROT, sROT, sA, sROT, sROT))
        elif rot == 9: self("s_lshr_b32 s%d, s%d, 1\ns_add_u32 s%d, s%d, s%d\ns_and_b32 s%d, s%d, 15" % (sROT, sD, sROT, sROT, sHKV, sROT, sROT))
        elif rot == 10: self("s_lshr_b32 s%d, s%d, 1\ns_and_b32 s%d, s%d, 1\ns_lshl_b32 s%d, s%d, 3\ns_add_u32 s%d, s%d, s%d\ns_and_b32 s%d, s%d, 15" % (sROT, sD, sA, sD, sA, sA, sROT, sROT, sA, sROT, sROT))
        elif rot == 11: self("s_lshr_b32 s%d, s%d, 1\ns_lshl_b32 s%d, s%d, 1\ns_add_u32 s%d, s%d, s%d\ns_and_b32 s%d, s%d, 15" % (sROT, sD, sA, sWAVE, sROT, sROT, sA, sROT, sROT))
        elif rot == 12: self("s_lshr_b32 s%d, s%d, 1\ns_mul_i32 s%d, s%d, 3\ns_and_b32 s%d, s%d, 15" % (sROT, sD, sROT, sROT, sROT, sROT))
        elif rot == 13: self("s_lshr_b32 s%d, s%d, 1\ns_mul_i32 s%d, s%d, 5\ns_add_u32 s%d, s%d, s%d\ns_add_u32 s%d, s%d, s%d\ns_and_b32 s%d, s%d, 15" % (sROT, sD, sROT, sROT, sROT, sROT, sWAVE, sROT, sROT, sHKV, sROT, sROT))
        else: self("s_mov_b32 s%d, 0" % sROT)
        self("s_sub_u32 s%d, s%d, 16\ns_cmp_lt_u32 s%d, 7\ns_cselect_b32 s%d, 0, 2\ns_cmp_lt_u32 s%d, 8\ns_cselect_b32 s%d, 0, s%d" % (sA, sD, sA, sROLE, sD, sROLE, sROLE))
        self("s_mov_b32 s%d, 0x10000000\ns_mov_b32 s%d, 0x20000" % (srdS + 2, srdS + 3))
        l = self.if_cmp("eq", sWAVE, 0)
        self("v_mov_b32 v%d, 0\nv_lshlrev_b32 v%d, 2, v%d\nv_add_u32 v%d, %d, v%d\nds_write_b32 v%d, v%d" % (vB, vA, vLANE, vA, FLG, vA, vA, vB))
        self.lab(l)
        self("s_cmp_ge_u32 s%d, 8\ns_cbranch_scc1 L_B" % sWAVE)
    def role_decode(self):
        e = self.nl("L_rd")
        self("s_mov_b32 s%d, %d\ns_lshl_b32 s%d, s%d, 3\ns_add_u32 s%d, s%d, s%d\ns_cmp_lt_u32 s%d, 8\ns_cbranch_scc1 %s" % (sROLE, R_Q, sIDX, sHKV, sIDX, sIDX, sD, sD, e))
        self("s_mov_b32 s%d, %d\ns_sub_u32 s%d, s%d, 8\ns_cmp_lt_u32 s%d, 16\ns_cbranch_scc1 %s" % (sROLE, R_WO, sIDX, sIDX, sD, e))
        self("s_sub_u32 s%d, s%d, 16\ns_lshl_b32 s%d, s%d, 3\ns_add_u32 s%d, s%d, s%d" % (sIDX, sD, sIDX, sIDX, sIDX, sIDX, sHKV))
        self("s_mov_b32 s%d, %d\ns_cmp_lt_u32 s%d, 56\ns_cbranch_scc1 %s" % (sROLE, R_GU, sIDX, e))
        self("s_mov_b32 s%d, %d\ns_sub_u32 s%d, s%d, 56\ns_cmp_lt_u32 s%d, 28\ns_cbranch_scc1 %s" % (sROLE, R_D, sIDX, sIDX, sIDX, e))
        self("s_mov_b32 s%d, %d\ns_sub_u32 s%d, s%d, 28\ns_cmp_lt_u32 s%d, 28\ns_cbranch_scc1 %s" % (sROLE, R_R, sIDX, sIDX, sIDX, e))
        self("s_mov_b32 s%d, %d" % (sROLE, R_N))
        self.lab(e)
    def after_karg(self):
        self("s_waitcnt lgkmcnt(0)\ns_barrier")
        self("s_load_dword s%d, s[%d:%d], 0\ns_mov_b32 s%d, 0" % (sTAG, sWS, sWS + 1, sVW))
        if self.opt.get("stamps"):
            l = self.if_cmp("eq", sWAVE, 0)
            self("s_memrealtime s[%d:%d]\ns_waitcnt lgkmcnt(0)\nv_writelane_b32 v%d, s%d, 0" % (sM0, sM0 + 1, vST, sM0))
            self.lab(l)
            self.stamp(1)
    def path_A(self):
        self("v_and_b32 v%d, 7, v%d\nv_lshlrev_b32 v%d, 9, v%d\nv_bfe_u32 v%d, v%d, 3, 1\nv_lshl_add_u32 v%d, v%d, 6, v%d\nv_lshrrev_b32 v%d, 4, v%d\nv_lshl_add_u32 v%d, v%d, 4, v%d"
             % (vK, vLANE, vK, vK, vA, vLANE, vK, vA, vK, vA, vLANE, vK, vA, vK))
        self("s_lshr_b32 s%d, s%d, 2\ns_lshl_b32 s%d, s%d, 12\ns_and_b32 s%d, s%d, 3\ns_lshl_b32 s%d, s%d, 7\ns_or_b32 s%d, s%d, s%d\ns_xor_b32 s%d, s%d, s%d"
             % (sA, sROT, sA, sA, sBt, sROT, sBt, sBt, sA, sA, sBt, sC, sKVOFF, sA))
        if self.opt.get("kcoal"):
            self("v_mov_b32 v%d, v%d\ns_lshl_b32 s%d, s%d, 10\ns_xor_b32 s%d, s%d, s%d" % (vK, vL16, sA, sROT, sC, sKVOFF, sA))
        self.after_karg()
        self("s_mov_b32 s%d, s%d\ns_mov_b32 s%d, s%d" % (srdS, sK, srdS + 1, sK + 1))
        l = self.if_cmp("lt", sROLE, R_D)
        self("s_barrier")
        self.prio(2)
        self.lab(l)
        for i in range(16):
            self("s_xor_b32 s%d, s%d, %d" % (sA, sC, (i << 10) if self.opt.get("kcoal") else (((i >> 2) << 12) | ((i & 3) << 7))))
            self("buffer_load_dwordx4 v[%d:%d], v%d, s[%d:%d], s%d offen nt" % (KR + 4 * i, KR + 4 * i + 3, vK, srdS, srdS + 3, sA))
        self.stamp(2); self.stamp(2, 7); self.stamp(2, 4)
        self.srd(srdWS, sWS, 0x40000000)
        self.code_prefetch(88)
        self.prio(self.opt.get("aprio", 3))
        self.role_decode()
        self.common_prep()
        self.role_prep()
        L = vLANE; t0, t1, t2 = vE, vH, vI
        self("s_lshl_b32 s%d, s%d, 3\ns_add_u32 s%d, s%d, s%d\ns_lshl_b32 s%d, s%d, 9" % (sA, sHKV, sA, sA, sWAVE, sA, sA))
        self("s_and_b32 s%d, s%d, 1\ns_lshl_b32 s%d, s%d, 8\ns_add_u32 s%d, s%d, s%d\ns_add_u32 s%d, s%d, %d" % (sBt, sD, sBt, sBt, sA, sA, sBt, sQPOLL, sA, QB))
        self("s_lshl_b32 s%d, s%d, 7\ns_add_u32 s%d, s%d, %d\nv_lshl_add_u32 v%d, v%d, 2, s%d" % (sA, sWAVE, sA, sA, QS, aQW, L, sA))
        self("v_bfe_u32 v%d, v%d, 1, 1\nv_lshlrev_b32 v%d, 9, v%d\nv_and_b32 v%d, 1, v%d\nv_lshl_add_u32 v%d, v%d, 6, v%d" % (t0, L, t0, t0, t1, L, t0, t1, t0))
        self("v_lshrrev_b32 v%d, 4, v%d\nv_lshl_add_u32 v%d, v%d, 4, v%d\nv_add_u32 v%d, %d, v%d" % (t2, L, t0, t2, t0, aQA, QS, t0))
        self("s_lshl_b32 s%d, s%d, 3\ns_add_u32 s%d, s%d, %d\nv_mov_b32 v%d, s%d" % (sA, sWAVE, sA, sA, MX, aMXW, sA))
        self("v_and_b32 v%d, 7, v%d\nv_lshlrev_b32 v%d, 3, v%d\nv_add_u32 v%d, %d, v%d" % (t0, L, t0, t0, aMXR, MX, t0))
        self("s_lshl_b32 s%d, s%d, 6\ns_add_u32 s%d, s%d, %d" % (sA, sWAVE, sA, sA, PS))
        self("v_and_b32 v%d, 15, v%d\nv_lshrrev_b32 v%d, 2, v%d\nv_lshlrev_b32 v%d, 4, v%d\nv_and_b32 v%d, 3, v%d\nv_lshl_add_u32 v%d, v%d, 1, v%d\nv_add_u32 v%d, s%d, v%d" % (t0, L, t0, t0, t0, t0, t1, L, t0, t1, t0, aPS, sA, t0))
        self("s_bfe_u32 s%d, s%d, 0x10002\ns_lshl_b32 s%d, s%d, 5\ns_bfe_u32 s%d, s%d, 0x10003\ns_lshl_b32 s%d, s%d, 3\ns_or_b32 s%d, s%d, s%d" % (sA, sROT, sA, sA, sBt, sROT, sBt, sBt, sA, sA, sBt))
        self("v_xor_b32 v%d, s%d, v%d\nv_xor_b32 v%d, 8, v%d" % (aPS, sA, aPS, aPS2, aPS))
        self("s_and_b32 s%d, s%d, 3\ns_lshl_b32 s%d, s%d, 7\nv_xor_b32 v%d, s%d, v%d" % (sA, sROT, sA, sA, aQA, sA, aQA))
        self.tag_ready()
        l = self.if_cmp("eq", sWAVE, 7)
        self("s_getreg_b32 s%d, hwreg(HW_REG_XCC_ID, 0, 4)" % sLOCAL)
        l2 = self.if_cmp("eq", sROLE, R_WO)
        self("s_lshl_b32 s%d, s%d, 3\ns_add_u32 s%d, s%d, %d\nv_mov_b32 v%d, s%d\nv_mov_b32 v%d, s%d\nv_mov_b32 v%d, 0" % (sA, sIDX, sA, sA, XT, GR, sLOCAL, GR + 1, sTAG, vE))
        self.execm(1)
        self("buffer_store_dwordx2 v[%d:%d], v%d, s[%d:%d], s%d offen sc1" % (GR, GR + 1, vE, srdWS, srdWS + 3, sA))
        self.execm(-1)
        self.lab(l2)
        self.lab(l)
        if self.opt.get("kfirst", 1): self("s_waitcnt vmcnt(0)")
        self.stamp(14, 0); self.stamp(14, 7); self.stamp(14, 4)
        self.poll_scalar([(sQPOLL, 0), (sQPOLL, 64)])
        self.scalars_to_lds(16, aQW)
        self("v_add_u32 v%d, 64, v%d" % (aQW, aQW))
        self.poll_scalar([(sQPOLL, 128), (sQPOLL, 192)])
        self.stamp(3)
        self.scalars_to_lds(16, aQW)
        self.arrive(C_S1)
        self.swait(C_S1, 8)
        QA = DD + 16
        self("ds_read_b128 v[%d:%d], v%d" % (QA, QA + 3, aQA))
        for t in range(1, 4):
            self("v_xor_b32 v%d, %d, v%d\nds_read_b128 v[%d:%d], v%d" % (vH, t * 128, aQA, QA + 4 * t, QA + 4 * t + 3, vH))
        self("s_waitcnt vmcnt(0) lgkmcnt(0)")
        self.stamp(4)
        for t in range(4):
            for c in range(4):
                D = DD + 4 * c
                self("v_mfma_f32_16x16x32_bf16 v[%d:%d], v[%d:%d], v[%d:%d], %s" % (D, D + 3, QA + 4 * t, QA + 4 * t + 3, KR + 16 * c + 4 * t, KR + 16 * c + 4 * t + 3, "0" if t == 0 else "v[%d:%d]" % (D, D + 3)))
        F = ACC
        for o2 in range(2):
            for h in range(2):
                self("v_add_f32_dpp v%d, v%d, v%d row_ror:8 row_mask:0xf bank_mask:0x3" % (F + 2 * o2 + h, DD + 8 * o2 + 2 * h + 1, DD + 8 * o2 + 2 * h))
        for o2 in range(2):
            for h in range(2):
                self("v_add_f32_dpp v%d, v%d, v%d row_ror:8 row_mask:0xf bank_mask:0xc" % (F + 2 * o2 + h, DD + 8 * o2 + 4 + 2 * h, DD + 8 * o2 + 4 + 2 * h + 1))
        self("v_cvt_pk_bf16_f32 v%d, v%d, v%d\nv_cvt_pk_bf16_f32 v%d, v%d, v%d" % (QA, F, F + 1, QA + 1, F + 2, F + 3))
        self("v_lshlrev_b32 v%d, 16, v%d\nv_and_b32 v%d, 0xffff0000, v%d\nv_lshlrev_b32 v%d, 16, v%d\nv_and_b32 v%d, 0xffff0000, v%d" % (F, QA, F + 1, QA, F + 2, QA + 1, F + 3, QA + 1))
        M0, M1 = GR, GR + 1
        self("v_max_f32 v%d, v%d, v%d\nv_max_f32 v%d, v%d, v%d" % (M0, F, F + 2, M1, F + 1, F + 3))
        self.row_allreduce([M0, M1], "v_max_f32")
        self.execm(1)
        self("ds_write_b64 v%d, v[%d:%d]" % (aMXW, M0, M1))
        self.execm(-1)
        self.arrive(C_S2)
        self.swait(C_S2, 8)
        self("ds_read_b64 v[%d:%d], v%d\ns_waitcnt lgkmcnt(0)" % (M0, M1, aMXR))
        self.row_allreduce([M0, M1], "v_max_f32", (4, 2, 1))
        P = QA + 4
        for k in range(4): self("v_sub_f32 v%d, v%d, v%d" % (P + k, F + k, M0 + (k & 1)))
        for k in range(4): self("v_mul_f32 v%d, 0x%x, v%d" % (P + k, C_EXP, P + k))
        for k in range(4): self("v_exp_f32 v%d, v%d" % (P + k, P + k))
        self("v_cvt_pk_bf16_f32 v%d, v%d, v%d\nv_cvt_pk_bf16_f32 v%d, v%d, v%d" % (QA, P, P + 1, QA + 1, P + 2, P + 3))
        S0, S1 = QA + 8, QA + 9
        self("v_add_f32 v%d, v%d, v%d\nv_add_f32 v%d, v%d, v%d" % (S0, P, P + 2, S1, P + 1, P + 3))
        self.execm(0xFFFF)
        self("ds_write_b16 v%d, v%d\nds_write_b16_d16_hi v%d, v%d offset:512\nds_write_b16 v%d, v%d\nds_write_b16_d16_hi v%d, v%d offset:512" % (aPS, QA, aPS, QA, aPS2, QA + 1, aPS2, QA + 1))
        self.execm(-1)
        self.row_allreduce([S0, S1], "v_add_f32")
        self.execm(1)
        self("ds_write_b64 v%d, v[%d:%d] offset:%d" % (aMXW, S0, S1, LS - MX))
        self.execm(-1)
        l = self.if_cmp("eq", sROLE, R_D)
        self("s_lshl_b32 s%d, s%d, 9\ns_lshl_b32 s%d, s%d, 6\ns_add_u32 s%d, s%d, s%d\ns_add_u32 s%d, s%d, %d\ns_add_u32 s%d, s%d, %d" % (sA, sIDX, sBt, sWAVE, sA, sA, sBt, sP4, sA, UB, sQPOLL, sA, GB))
        self("v_and_b32 v%d, 7, v%d\nv_lshlrev_b32 v%d, 2, v%d\nv_bfe_u32 v%d, v%d, 3, 1\nv_lshl_add_u32 v%d, v%d, 8, v%d\ns_lshl_b32 s%d, s%d, 5\ns_add_u32 s%d, s%d, %d\nv_add_u32 v%d, s%d, v%d"
             % (aQW, vLANE, aQW, aQW, vI, vLANE, aQW, vI, aQW, sA, sWAVE, sA, sA, GU, aQW, sA, aQW))
        self.poll_scalar([(sQPOLL, 0), (sP4, 0)])
        self.scalars_to_lds(16, aQW)
        self.lab(l)
        if self.opt.get("local", 1):
            l = self.if_cmp("eq", sWAVE, 7)
            self("s_lshl_b32 s%d, s%d, 6\ns_add_u32 s%d, s%d, %d" % (sQPOLL, sHKV, sQPOLL, sQPOLL, XT))
            self.poll_scalar([(sQPOLL, 0)])
            self("s_xor_b32 s%d, s%d, s%d" % (sC, sP0, sLOCAL))
            for i in range(1, 8): self("s_xor_b32 s%d, s%d, s%d\ns_or_b32 s%d, s%d, s%d" % (sBt, sP0 + 2 * i, sLOCAL, sC, sC, sBt))
            self("s_cmp_eq_u32 s%d, 0\ns_cselect_b32 s%d, 1, 0\ns_cmp_eq_u32 s%d, s%d\ns_cselect_b32 s%d, s%d, 0" % (sC, sC, sP0 + 1, sTAG, sC, sC))
            self("v_mov_b32 v%d, %d\nv_mov_b32 v%d, s%d" % (vE, C_LOC, vH, sC))
            self.execm(1)
            self("ds_write_b32 v%d, v%d" % (vE, vH))
            self.execm(-1)
            self.lab(l)
        self.stamp(5)
        self.arrive(C_SP)
        self("s_branch L_JOIN")
    def path_B(self):
        self.lab("L_B")
        self("s_mov_b32 s%d, 0" % sLOCAL)
        self("v_lshrrev_b32 v%d, 5, v%d\nv_and_b32 v%d, 31, v%d\nv_lshlrev_b32 v%d, 1, v%d\nv_xor_b32 v%d, v%d, v%d" % (vA, vLANE, vB, vLANE, vC, vA, vB, vB, vC))
        self("v_lshlrev_b32 v%d, 4, v%d\nv_lshl_add_u32 v%d, v%d, 9, v%d" % (vB, vB, vV0, vA, vB))
        self("v_xor_b32 v%d, 64, v%d\nv_xor_b32 v%d, 0x80, v%d\nv_xor_b32 v%d, 0xc0, v%d" % (vV0 + 1, vV0, vV0 + 2, vV0, vV0 + 3, vV0))
        self("s_and_b32 s%d, s%d, 7\ns_lshl_b32 s%d, s%d, 14\ns_lshl_b32 s%d, s%d, 10\ns_xor_b32 s%d, s%d, s%d\ns_xor_b32 s%d, s%d, s%d" % (sP1, sWAVE, sP1, sP1, sA, sROT, sP1, sP1, sA, sP2, sKVOFF, sA))
        self("s_and_b32 s%d, s%d, 3\ns_lshl_b32 s%d, s%d, 6" % (sA, sROT, sA, sA))
        for k in range(4): self("v_xor_b32 v%d, s%d, v%d" % (vV0 + k, sA, vV0 + k))
        self.after_karg()
        self("s_mov_b32 s%d, s%d\ns_mov_b32 s%d, s%d" % (srdS, sV, srdS + 1, sV + 1))
        self("s_cmp_ge_u32 s%d, %d\ns_cbranch_scc1 L_B_v" % (sROLE, R_D))
        self.srd(srdWS, sWS, 0x40000000)
        self.role_decode()
        self("s_cmp_eq_u32 s%d, 15\ns_cbranch_scc1 L_B_nod" % sWAVE)
        self("s_sub_u32 s%d, s%d, 8" % (sDW, sWAVE))
        self("s_cmp_eq_u32 s%d, %d\ns_cbranch_scc0 L_B_gu" % (sROLE, R_Q))
        self.srd(srdW, sWQ, 448 * 4096 * 2)
        self("s_mov_b32 s%d, 8192\ns_lshl_b32 s%d, s%d, 9\ns_add_u32 s%d, s%d, %d\ns_branch L_B_d" % (sSTRIDE, sDST, sIDX, sDST, sDST, QB))
        self.lab("L_B_gu")
        self.srd(srdW, sGATE, 448 * 1792 * 2)
        self("s_mov_b32 s%d, %d\ns_cmp_lt_u32 s%d, 28\ns_cbranch_scc1 L_B_g" % (sDST, GB, sIDX))
        self("s_mov_b32 s%d, s%d\ns_mov_b32 s%d, s%d\ns_sub_u32 s%d, s%d, 28\ns_mov_b32 s%d, %d" % (srdW, sUP, srdW + 1, sUP + 1, sIDX, sIDX, sDST, UB))
        self.lab("L_B_g")
        self("s_mov_b32 s%d, 3584\ns_lshl_b32 s%d, s%d, 9\ns_add_u32 s%d, s%d, s%d" % (sSTRIDE, sA, sIDX, sDST, sDST, sA))
        self.lab("L_B_d")
        self.srd(srdX, sX, 1792)
        XR = DD; XA = DD + 12
        self("v_lshrrev_b32 v%d, 5, v%d\nv_mul_u32_u24 v%d, 896, v%d\nv_and_b32 v%d, 31, v%d\nv_lshl_add_u32 v%d, v%d, 5, v%d" % (vA, vLANE, vA, vA, vC, vLANE, vB, vC, vA))
        self("v_cmp_le_u32 vcc, 28, v%d\nv_mov_b32 v%d, 0x10000000\nv_cndmask_b32 v%d, v%d, v%d, vcc" % (vC, vC, vB, vB, vC))
        self("buffer_load_dwordx4 v[%d:%d], v%d, s[%d:%d], 0 offen\nbuffer_load_dwordx4 v[%d:%d], v%d, s[%d:%d], 0 offen offset:16" % (XR, XR + 3, vB, srdX, srdX + 3, XR + 4, XR + 7, vB, srdX, srdX + 3))
        self("v_bfe_u32 v%d, v%d, 1, 1\nv_mul_u32_u24 v%d, 896, v%d\nv_lshrrev_b32 v%d, 4, v%d\nv_lshl_add_u32 v%d, v%d, 5, v%d" % (vA, vLANE, vA, vA, vC, vLANE, vA, vC, vA))
        self("v_and_b32 v%d, 1, v%d\nv_lshl_add_u32 v%d, v%d, 4, v%d\ns_lshl_b32 s%d, s%d, 7" % (vC, vLANE, vA, vC, vA, sA, sDW))
        self("buffer_load_dwordx4 v[%d:%d], v%d, s[%d:%d], s%d offen" % (XA, XA + 3, vA, srdX, srdX + 3, sA))
        self("s_lshl_b32 s%d, s%d, 6\ns_mul_i32 s%d, s%d, s%d\ns_lshl_b32 s%d, s%d, 7\ns_add_u32 s%d, s%d, s%d" % (sA, sDW, sA, sA, sSTRIDE, sDOFF, sIDX, sDOFF, sDOFF, sA))
        self.duty_lane_addr()
        self.issue_duty()
        self("s_barrier")
        self.stamp(2, 8)
        FX = DD + 16
        self("s_waitcnt vmcnt(8)")
        for i in range(8):
            self("v_lshlrev_b32 v%d, 16, v%d\nv_and_b32 v%d, 0xffff0000, v%d" % (FX + 2 * i, XR + i, FX + 2 * i + 1, XR + i))
        S = 116; T = 117; U2 = 118; W2 = 119
        self("v_add_f32 v%d, v%d, v%d\nv_add_f32 v%d, v%d, v%d\nv_add_f32 v%d, v%d, v%d\nv_add_f32 v%d, v%d, v%d" % (S, FX, FX + 1, T, FX + 2, FX + 3, U2, FX + 4, FX + 5, W2, FX + 6, FX + 7))
        for k, r in enumerate((S, T, U2, W2)): self("v_add_f32 v%d, v%d, v%d" % (r, r, FX + 8 + 2 * k))
        for k, r in enumerate((S, T, U2, W2)): self("v_add_f32 v%d, v%d, v%d" % (r, r, FX + 9 + 2 * k))
        self("v_add_f32 v%d, v%d, v%d\nv_add_f32 v%d, v%d, v%d\nv_add_f32 v%d, v%d, v%d" % (S, S, T, U2, U2, W2, S, S, U2))
        self.row_allreduce([S], "v_add_f32"); self.cross16([S], [T], "v_add_f32")
        self("v_mul_f32 v%d, 0x%x, v%d" % (S, f2u(1.0 / 448), S))
        for i in range(16): self("v_sub_f32 v%d, v%d, v%d" % (FX + i, FX + i, S))
        self("v_mul_f32 v%d, v%d, v%d\nv_mul_f32 v%d, v%d, v%d\nv_mul_f32 v%d, v%d, v%d\nv_mul_f32 v%d, v%d, v%d" % (T, FX, FX, U2, FX + 1, FX + 1, W2, FX + 2, FX + 2, vE, FX + 3, FX + 3))
        for i in range(4, 16): self("v_fmac_f32 v%d, v%d, v%d" % ((T, U2, W2, vE)[i % 4], FX + i, FX + i))
        self("v_add_f32 v%d, v%d, v%d\nv_add_f32 v%d, v%d, v%d\nv_add_f32 v%d, v%d, v%d" % (T, T, U2, W2, W2, vE, T, T, W2))
        self.smask(sM0, 0x0FFFFFFF0FFFFFFF)
        self("v_cndmask_b32 v%d, 0, v%d, s[%d:%d]" % (T, T, sM0, sM0 + 1))
        self.row_allreduce([T], "v_add_f32"); self.cross16([T], [U2], "v_add_f32")
        self("v_mul_f32 v%d, 0x%x, v%d" % (T, f2u(1.0 / 448), T))
        self.bf16r(S, S); self.bf16r(T, T)
        self("v_add_f32 v%d, 0x%x, v%d" % (T, f2u(1e-5), T))
        self.bf16r(T, T)
        self("v_sqrt_f32 v%d, v%d" % (T, T))
        self.bf16r(T, T)
        self("v_mov_b32 v%d, v%d\nv_mov_b32 v%d, v%d" % (U2, S, W2, T))
        self("v_permlane32_swap_b32 v%d, v%d\nv_permlane32_swap_b32 v%d, v%d" % (S, U2, T, W2))
        self.smask(sM0, 0xCCCCCCCCCCCCCCCC)
        self("v_cndmask_b32 v%d, v%d, v%d, s[%d:%d]\nv_cndmask_b32 v%d, v%d, v%d, s[%d:%d]" % (S, S, U2, sM0, sM0 + 1, T, T, W2, sM0, sM0 + 1))
        self("v_rcp_f32 v%d, v%d" % (U2, T))
        E = FX
        for k in range(4): self("v_lshlrev_b32 v%d, 16, v%d\nv_and_b32 v%d, 0xffff0000, v%d" % (E + 2 * k, XA + k, E + 2 * k + 1, XA + k))
        for k in range(8): self("v_sub_f32 v%d, v%d, v%d" % (E + k, E + k, S))
        for k in range(4): self("v_cvt_pk_bf16_f32 v%d, v%d, v%d" % (XA + k, E + 2 * k, E + 2 * k + 1))
        for k in range(4): self("v_lshlrev_b32 v%d, 16, v%d\nv_and_b32 v%d, 0xffff0000, v%d" % (E + 2 * k, XA + k, E + 2 * k + 1, XA + k))
        for k in range(8): self("v_mul_f32 v%d, v%d, v%d" % (E + 8 + k, E + k, U2))
        for k in range(8): self("v_fma_f32 v%d, -v%d, v%d, v%d" % (XR + k, E + 8 + k, T, E + k))
        for k in range(8): self("v_fmac_f32 v%d, v%d, v%d" % (E + 8 + k, XR + k, U2))
        AFq = ACC
        for k in range(4): self("v_cvt_pk_bf16_f32 v%d, v%d, v%d" % (AFq + k, E + 8 + 2 * k, E + 9 + 2 * k))
        self("v_bfe_u32 v%d, v%d, 3, 1\nv_lshlrev_b32 v%d, 8, v%d\nv_and_b32 v%d, 7, v%d\nv_lshl_add_u32 v%d, v%d, 5, v%d\nv_lshrrev_b32 v%d, 4, v%d\nv_lshl_add_u32 v%d, v%d, 3, v%d"
             % (vF, vLANE, vF, vF, vG, vLANE, vF, vG, vF, vG, vLANE, vF, vG, vF))
        self("s_lshl_b32 s%d, s%d, 9\ns_add_u32 s%d, s%d, %d\nv_add_u32 v%d, s%d, v%d" % (sA, sDW, sA, sA, RED, vF, sA, vF))
        self("s_waitcnt vmcnt(0)")
        self.stamp(11, 8)
        self.duty_perm(DD)
        self.duty_mfma(AFq, DD, GR)
        self("v_mov_b32 v%d, v%d" % (GR + 1, GR + 2))
        self("ds_write_b64 v%d, v[%d:%d]" % (vF, GR, GR + 1))
        self.tag_ready()
        self("s_mov_b32 s%d, 1" % sLOCAL)
        self("s_lshl_b32 s%d, s%d, 2\ns_add_u32 s%d, s%d, %d\nv_mov_b32 v%d, s%d\nv_mov_b32 v%d, 1" % (sA, sDW, sA, sA, FLG, vF, sA, vG))
        self.execm(1)
        self("ds_write_b32 v%d, v%d" % (vF, vG))
        self.execm(-1)
        l = self.if_cmp("eq", sWAVE, 8)
        lp = self.nl("L_flg"); dn = self.nl("L_flgd")
        self("v_min_u32 v%d, 6, v%d\nv_lshlrev_b32 v%d, 2, v%d\nv_add_u32 v%d, %d, v%d" % (vF, vLANE, vF, vF, vF, FLG, vF))
        self("s_mov_b32 s%d, %d" % (sLOOP, 1000000))
        self.lab(lp)
        self("ds_read_b32 v%d, v%d\ns_waitcnt lgkmcnt(0)\nv_cmp_ne_u32 vcc, 1, v%d\ns_cbranch_vccz %s" % (vG, vF, vG, dn))
        self("s_sub_u32 s%d, s%d, 1\ns_cmp_lg_u32 s%d, 0\ns_cbranch_scc1 %s" % (sLOOP, sLOOP, sLOOP, lp))
        self.lab(dn)
        self("v_lshlrev_b32 v%d, 3, v%d\nv_add_u32 v%d, %d, v%d" % (vG, vLANE, vF, RED, vG))
        for k in range(7): self("ds_read_b64 v[%d:%d], v%d offset:%d" % (DD + 2 * k, DD + 2 * k + 1, vF, k * 512))
        self("s_waitcnt lgkmcnt(0)")
        for (d, s_) in ((0, 2), (4, 6), (8, 10), (0, 4), (8, 12), (0, 8)):
            self("v_add_f32 v%d, v%d, v%d\nv_add_f32 v%d, v%d, v%d" % (DD + d, DD + d, DD + s_, DD + d + 1, DD + d + 1, DD + s_ + 1))
        self("v_cvt_pk_bf16_f32 v%d, v%d, v%d\nv_mov_b32 v%d, s%d" % (GR, DD, DD + 1, GR + 1, sTAG))
        self("buffer_store_dwordx2 v[%d:%d], v%d, s[%d:%d], s%d offen sc1" % (GR, GR + 1, vG, srdWS, srdWS + 3, sDST))
        self.lab(l)
        self.stamp(8, 8)
        self("s_branch L_B_v2")
        self.lab("L_B_nod")
        self("s_barrier")
        self.lab("L_B_v")
        self.lab("L_B_v2")
        self.prio(1)
        for i in range(16):
            self("s_xor_b32 m0, s%d, %d\ns_xor_b32 s%d, s%d, %d" % (sP1, i * 1024, sA, sP2, i * 1024))
            self("buffer_load_dwordx4 v%d, s[%d:%d], s%d offen nt lds" % (vV0 + (i % 4), srdS, srdS + 3, sA))
            if i == self.opt.get("bprep", 3):
                self.code_prefetch(RAW)
        self.stamp(2, 15); self.stamp(2, 8) if False else None; self.stamp(12, 8);
        self.srd(srdWS, sWS, 0x40000000)
        self.role_decode()
        l = self.nl("L_tg")
        self("s_cmp_eq_u32 s%d, 1\ns_cbranch_scc1 %s" % (sLOCAL, l))
        self.tag_ready()
        self.lab(l)
        if not self.opt.get("dlate", 0):
            self.role_prep()
            l = self.nl("L_nld")
            self("s_sub_u32 s%d, s%d, %d\ns_cmp_ge_u32 s%d, 2\ns_cbranch_scc1 %s" % (sA, sROLE, R_D, sA, l))
            self("s_cmp_eq_u32 s%d, 15\ns_cbranch_scc1 %s" % (sWAVE, l))
            self.prio(0)
            self.issue_duty()
            self("s_mov_b32 s%d, 8" % sVW)
            self.lab(l)
            self.common_prep()
        else:
            self.common_prep()
            self.role_prep()
    def vwait(self):
        if self.opt.get("dlate", 0):
            self("s_waitcnt vmcnt(0)"); return
        l1 = self.nl("L_vw"); l2 = self.nl("L_vw")
        self("s_cmp_eq_u32 s%d, 8\ns_cbranch_scc1 %s\ns_waitcnt vmcnt(0)\ns_branch %s" % (sVW, l1, l2))
        self.lab(l1)
        self("s_waitcnt vmcnt(8)")
        self.lab(l2)
    def join_pv(self):
        self.lab("L_JOIN")
        self.swait(C_SP, 8)
        for T in range(8):
            self("ds_read_b128 v[%d:%d], v%d offset:%d" % (KR + 4 * T, KR + 4 * T + 3, aPA, T * 64))
        self("ds_read_b32 v%d, v%d\nds_read_b32 v%d, v%d offset:%d" % (GR, aML, GR + 2, aML, LS - MX))
        self("v_mov_b32 v%d, %d\nds_read_b32 v%d, v%d" % (vE, C_LOC, vH, vE))
        self("v_mov_b32 v%d, s%d" % (GR + 3, sTAG))
        self("s_waitcnt lgkmcnt(0)")
        self("v_readfirstlane_b32 s%d, v%d" % (sLOCAL, vH))
        for st in (4, 2, 1):
            self("v_max_f32_dpp v%d, v%d, v%d row_ror:%d %s\nv_add_f32_dpp v%d, v%d, v%d row_ror:%d %s" % (GR, GR, GR, st, DPPALL, GR + 2, GR + 2, GR + 2, st, DPPALL))
        self.smask(sM0, 0xCCCCCCCCCCCCCCCC)
        self("v_cndmask_b32 v%d, v%d, v%d, s[%d:%d]" % (GR + 2, GR, GR + 2, sM0, sM0 + 1))
        self.stamp(13)
        VB = DD
        def pv_stage(T0, T1):
            n = T1 - T0
            for T in range(T0, T1):
                base = aT1 if T < 4 else aT2
                o = (T % 4) * 16384
                self("ds_read_b64_tr_b16 v[%d:%d], v%d offset:%d" % (VB + 4 * T, VB + 4 * T + 1, base, o))
                self("ds_read_b64_tr_b16 v[%d:%d], v%d offset:%d" % (VB + 4 * T + 2, VB + 4 * T + 3, base, o + 8192))
            for T in range(T0, T1):
                self("s_waitcnt lgkmcnt(%d)" % (2 * (T1 - 1 - T)))
                self("v_mfma_f32_16x16x32_bf16 v[%d:%d], v[%d:%d], v[%d:%d], %s" % (ACC, ACC + 3, KR + 4 * T, KR + 4 * T + 3, VB + 4 * T, VB + 4 * T + 3, "0" if T == 0 else "v[%d:%d]" % (ACC, ACC + 3)))
        if self.opt.get("pv2", 1):
            l = self.nl("L_cv")
            self("s_sub_u32 s%d, s%d, 8\ns_cmp_ge_u32 s%d, 4\ns_cbranch_scc1 %s" % (sA, sWAVE, sA, l))
            self.vwait()
            self.arrive(C_V1)
            self.lab(l)
            self.swait(C_V1, 4)
            pv_stage(0, 4)
            self.vwait()
            self("s_barrier")
            self.stamp(6)
            pv_stage(4, 8)
        else:
            self.vwait()
            self("s_barrier")
            self.stamp(6)
            pv_stage(0, 8)
        self("v_permlane16_swap_b32 v%d, v%d" % (ACC, ACC + 1))
        self("v_mov_b32 v%d, v%d" % (GR, ACC))
        self("v_mov_b32_dpp v%d, v%d quad_perm:[1,0,3,2] %s" % (GR + 1, ACC, DPPALL))
        self.execm(0x55555555)
        if self.opt.get("local", 1):
            l1 = self.nl("L_loc"); l2 = self.nl("L_loc")
            self("s_cmp_eq_u32 s%d, 1\ns_cbranch_scc1 %s" % (sLOCAL, l1))
            self("buffer_store_dwordx4 v[%d:%d], v%d, s[%d:%d], s%d offen sc1" % (GR, GR + 3, aOP, srdWS, srdWS + 3, sOPUB))
            self("s_branch %s" % l2)
            self.lab(l1)
            self("buffer_store_dwordx4 v[%d:%d], v%d, s[%d:%d], s%d offen %s" % (GR, GR + 3, aOP, srdWS, srdWS + 3, sOPUB, {0: "", 1: "nt", 2: "sc0"}[self.opt.get("lpol", 0)]))
            self.lab(l2)
        else:
            self("buffer_store_dwordx4 v[%d:%d], v%d, s[%d:%d], s%d offen sc1" % (GR, GR + 3, aOP, srdWS, srdWS + 3, sOPUB))
        self.execm(-1)
        self.stamp(7); self.stamp(7, 15)
        if self.opt.get("stamps"): self("v_writelane_b32 v%d, s%d, 20" % (vST, sLOCAL))
        self("s_cmp_eq_u32 s%d, %d\ns_cbranch_scc1 L_T_WO" % (sROLE, R_WO))
        self("s_cmp_eq_u32 s%d, %d\ns_cbranch_scc1 L_T_R" % (sROLE, R_R))
        self("s_cmp_eq_u32 s%d, %d\ns_cbranch_scc1 L_T_D" % (sROLE, R_D))
        self("s_branch L_FIN")
    def tail_D(self):
        self.lab("L_T_D")
        l = self.if_duty_wave()
        if self.opt.get("dlate", 0): self.issue_duty()
        Gr = DD; Ur = DD + 4; H = DD + 8
        self("ds_read_b128 v[%d:%d], v%d\nds_read_b128 v[%d:%d], v%d offset:256" % (Gr, Gr + 3, vA, Ur, Ur + 3, vA))
        self("s_waitcnt lgkmcnt(0)")
        for k in range(4):
            self("v_lshlrev_b32 v%d, 16, v%d\nv_and_b32 v%d, 0xffff0000, v%d\nv_lshlrev_b32 v%d, 16, v%d\nv_and_b32 v%d, 0xffff0000, v%d" % (H + 2 * k, Gr + k, H + 2 * k + 1, Gr + k, H + 8 + 2 * k, Ur + k, H + 9 + 2 * k, Ur + k))
        for k in range(8): self("v_mul_f32 v%d, v%d, v%d" % (H + k, H + k, H + 8 + k))
        for k in range(4): self("v_cvt_pk_bf16_f32 v%d, v%d, v%d" % (ACC + k, H + 2 * k, H + 2 * k + 1))
        self("v_mov_b32 v%d, s%d\nv_mov_b32 v%d, s%d" % (GR + 1, sTAG, GR + 3, sTAG))
        self("s_waitcnt vmcnt(0)")
        self.duty_perm(KR)
        self.duty_mfma(ACC, KR, GR)
        self("buffer_store_dwordx4 v[%d:%d], v%d, s[%d:%d], s%d offen sc1" % (GR, GR + 3, vB, srdWS, srdWS + 3, sP2))
        self.lab(l)
        self.stamp(8)
        self("s_branch L_FIN")
    def tail_WO(self):
        self.lab("L_T_WO")
        hO, hW, hAF, hP = vA, vC, vF, vG
        OD = DD; OE = DD + 4
        ldO = ["buffer_load_dwordx4 v[%d:%d], v%d, s[%d:%d], s%d offen sc1" % (OD, OD + 3, hO, srdWS, srdWS + 3, sP1),
               "buffer_load_dwordx4 v[%d:%d], v%d, s[%d:%d], s%d offen offset:256 sc1" % (OE, OE + 3, hO, srdWS, srdWS + 3, sP1)]
        self("s_cmp_ge_u32 s%d, 8\ns_cbranch_scc1 L_T_WO_B" % sWAVE)
        self(ldO[0]); self(ldO[1])
        self.masked_poll(ldO, [OD + 3, OE + 3], 0)
        self.stamp(9)
        if self.opt.get("stamps"): self("v_writelane_b32 v%d, s%d, 21" % (vST, sLOOP))
        Mm = DD + 8; Ll = DD + 9; Mx = DD + 10; Wt = DD + 11
        self("v_mov_b32 v%d, v%d\nv_mov_b32 v%d, v%d" % (Mm, OD + 2, Ll, OD + 2))
        self("v_permlane16_swap_b32 v%d, v%d" % (Mm, Ll))
        self("v_max_f32_dpp v%d, v%d, v%d row_ror:8 %s" % (Mx, Mm, Mm, DPPALL))
        self.row_allreduce([Mx], "v_max_f32", (4, 2, 1))
        self("v_sub_f32 v%d, v%d, v%d\nv_mul_f32 v%d, 0x%x, v%d\nv_exp_f32 v%d, v%d" % (Wt, Mm, Mx, Wt, C_EXP, Wt, Wt, Wt))
        self("v_mul_f32 v%d, v%d, v%d\nv_mul_f32 v%d, v%d, v%d\nv_mul_f32 v%d, v%d, v%d\nv_mul_f32 v%d, v%d, v%d\nv_mul_f32 v%d, v%d, v%d" % (Ll, Ll, Wt, OD, OD, Wt, OD + 1, OD + 1, Wt, OE, OE, Wt, OE + 1, OE + 1, Wt))
        self.row_allreduce([Ll, OD, OD + 1, OE, OE + 1], "v_add_f32")
        self("v_rcp_f32 v%d, v%d" % (Ll, Ll))
        self("v_mul_f32 v%d, v%d, v%d\nv_mul_f32 v%d, v%d, v%d\nv_mul_f32 v%d, v%d, v%d\nv_mul_f32 v%d, v%d, v%d" % (OD, OD, Ll, OD + 1, OD + 1, Ll, OE, OE, Ll, OE + 1, OE + 1, Ll))
        self("v_cvt_pk_bf16_f32 v%d, v%d, v%d\nv_cvt_pk_bf16_f32 v%d, v%d, v%d" % (OD, OD, OD + 1, OE, OE, OE + 1))
        self.execm(0x0001000100010001)
        self("ds_write_b32 v%d, v%d\nds_write_b32 v%d, v%d offset:64" % (hW, OD, hW, OE))
        self.execm(-1)
        self("s_waitcnt lgkmcnt(0)\ns_barrier")
        self.stamp(12)
        self("s_branch L_FIN")
        self.lab("L_T_WO_B")
        l = self.if_duty_wave()
        if self.opt.get("dlate", 0): self.issue_duty()
        self("v_mov_b32 v%d, s%d\nv_mov_b32 v%d, s%d" % (GR + 1, sTAG, GR + 3, sTAG))
        self("s_waitcnt vmcnt(0)")
        self.duty_perm(KR)
        self.lab(l)
        self("s_barrier")
        l = self.if_duty_wave()
        self("ds_read_b128 v[%d:%d], v%d\ns_waitcnt lgkmcnt(0)" % (ACC, ACC + 3, hAF))
        self.duty_mfma(ACC, KR, GR)
        self("buffer_store_dwordx4 v[%d:%d], v%d, s[%d:%d], s%d offen sc1" % (GR, GR + 3, hP, srdWS, srdWS + 3, sP3))
        self.stamp(10, 8)
        self.lab(l)
        self("s_branch L_FIN")
    def tail_R(self):
        self.lab("L_T_R")
        VO, aRSW, aRSR = vA, vB, vC
        XV = vF; GS = vG
        self("s_cmp_ge_u32 s%d, 8\ns_cbranch_scc1 L_T_R_B" % sWAVE)
        self("buffer_load_ushort v%d, v%d, s[%d:%d], 0 offen" % (XV, VO, srdX, srdX + 3))
        ldF = "buffer_load_dwordx4 v[%d:%d], v%d, s[%d:%d], s%d offen sc1" % (DD, DD + 3, vL16, srdWS, srdWS + 3, sP1)
        S0 = DD + 8; S1 = DD + 12
        ldS = ["buffer_load_dwordx4 v[%d:%d], v%d, s[%d:%d], s%d offen sc1" % (S0, S0 + 3, vL16, srdWS, srdWS + 3, sP2),
               "buffer_load_dwordx4 v[%d:%d], v%d, s[%d:%d], s%d offen offset:1024 sc1" % (S1, S1 + 3, vL16, srdWS, srdWS + 3, sP2)]
        l = self.if_cmp("lt", sWAVE, 7)
        self(ldF)
        self.masked_poll(ldF, [DD + 1, DD + 3], 0)
        self.cross16([DD, DD + 2], [DD + 4, DD + 5], "v_add_f32"); self.cross32([DD, DD + 2], [DD + 4, DD + 5], "v_add_f32")
        self("v_mov_b32 v%d, v%d" % (DD + 1, DD + 2))
        self.execm(0xFFFF)
        self("ds_write_b64 v%d, v[%d:%d] offset:2048" % (aRSW, DD, DD + 1))
        self.execm(-1)
        self.lab(l)
        self("s_waitcnt lgkmcnt(0)\ns_barrier")
        self(ldS[0]); self(ldS[1])
        l = self.if_cmp("eq", sWAVE, 0)
        self("v_and_b32 v%d, 31, v%d\nv_lshlrev_b32 v%d, 2, v%d\nv_add_u32 v%d, %d, v%d" % (vE, vLANE, vE, vE, vE, RSF, vE))
        F = DD + 16
        for w in range(7): self("ds_read_b32 v%d, v%d offset:%d" % (F + w, vE, w * 128))
        self("s_waitcnt lgkmcnt(0)")
        self("v_add_f32 v%d, v%d, v%d\nv_add_f32 v%d, v%d, v%d\nv_add_f32 v%d, v%d, v%d\nv_add_f32 v%d, v%d, v%d\nv_add_f32 v%d, v%d, v%d\nv_add_f32 v%d, v%d, v%d"
             % (F, F, F + 1, F + 2, F + 2, F + 3, F + 4, F + 4, F + 5, F, F, F + 2, F + 4, F + 4, F + 6, F, F, F + 4))
        self.bf16r(F, F)
        self("v_mul_f32 v%d, 0x%x, v%d\nv_exp_f32 v%d, v%d\nv_add_f32 v%d, 1.0, v%d\nv_rcp_f32 v%d, v%d\nv_mul_f32 v%d, v%d, v%d" % (F + 1, f2u(-LOG2E), F, F + 1, F + 1, F + 1, F + 1, F + 1, F + 1, F, F, F + 1))
        self.bf16r(GS, F)
        self.lab(l)
        self.stamp(9)
        lp = self.nl("L_rp"); dn = self.nl("L_rpd"); ck = self.nl("L_rpc")
        self("s_mov_b32 s%d, %d" % (sLOOP, self.opt.get("maxpoll", 20000)))
        self("s_waitcnt vmcnt(0)\ns_branch %s" % ck)
        self.lab(lp)
        if self.opt.get("vsleep", 1): self("s_sleep %d" % self.opt.get("vsleep", 1))
        self(ldS[0]); self(ldS[1])
        self("s_waitcnt vmcnt(0)")
        self.lab(ck)
        self("v_cmp_ne_u32 vcc, s%d, v%d\nv_cmp_ne_u32 s[%d:%d], s%d, v%d\nv_cmp_ne_u32 s[%d:%d], s%d, v%d\nv_cmp_ne_u32 s[%d:%d], s%d, v%d"
             % (sTAG, S0 + 1, sM0, sM0 + 1, sTAG, S0 + 3, sP0, sP0 + 1, sTAG, S1 + 1, sP0 + 2, sP0 + 3, sTAG, S1 + 3))
        self("s_or_b64 vcc, vcc, s[%d:%d]\ns_or_b64 s[%d:%d], s[%d:%d], s[%d:%d]\ns_or_b64 vcc, vcc, s[%d:%d]" % (sM0, sM0 + 1, sP0, sP0 + 1, sP0, sP0 + 1, sP0 + 2, sP0 + 3, sP0, sP0 + 1))
        self("s_cbranch_scc0 %s" % dn)
        self("s_mov_b64 exec, vcc")
        self("s_sub_u32 s%d, s%d, 1\ns_cmp_lg_u32 s%d, 0\ns_cbranch_scc1 %s" % (sLOOP, sLOOP, sLOOP, lp))
        self.lab(dn)
        self("s_mov_b64 exec, -1")
        self.stamp(10)
        self("v_add_f32 v%d, v%d, v%d\nv_add_f32 v%d, v%d, v%d" % (S0, S0, S1, S0 + 2, S0 + 2, S1 + 2))
        self.cross16([S0, S0 + 2], [DD + 4, DD + 5], "v_add_f32"); self.cross32([S0, S0 + 2], [DD + 4, DD + 5], "v_add_f32")
        self("v_mov_b32 v%d, v%d" % (S0 + 1, S0 + 2))
        self.execm(0xFFFF)
        self("ds_write_b64 v%d, v[%d:%d]" % (aRSW, S0, S0 + 1))
        self.execm(-1)
        self("s_waitcnt lgkmcnt(0)\ns_barrier")
        self.stamp(12)
        l = self.if_cmp("eq", sWAVE, 0)
        for w in range(4): self("ds_read_b32 v%d, v%d offset:%d" % (DD + w, aRSR, w * 128))
        self("v_lshlrev_b32 v%d, 16, v%d" % (XV, XV))
        self("s_waitcnt lgkmcnt(0)")
        for st in (2, 1):
            for k in range(st): self("v_add_f32 v%d, v%d, v%d" % (DD + k, DD + k, DD + k + st))
        self.cross32([DD], [DD + 1], "v_add_f32")
        self.bf16r(DD, DD)
        self("v_mul_f32 v%d, v%d, v%d" % (DD, DD, GS))
        self.bf16r(DD, DD)
        self("v_add_f32 v%d, v%d, v%d\nv_cvt_pk_bf16_f32 v%d, v%d, v%d" % (DD, XV, DD, DD, DD, DD))
        self.execm(0xFFFFFFFF)
        self("buffer_store_short v%d, v%d, s[%d:%d], 0 offen" % (DD, VO, srdOUT, srdOUT + 3))
        self.execm(-1)
        l2 = self.if_cmp("eq", sIDX, 0)
        self("v_mov_b32 v%d, s%d\nv_mov_b32 v%d, 0" % (vE, sTAG, vH))
        self.execm(1)
        self("buffer_store_dword v%d, v%d, s[%d:%d], 0 offen sc1" % (vE, vH, srdWS, srdWS + 3))
        self.execm(-1)
        self.lab(l2)
        self.lab(l)
        self("s_branch L_FIN")
        self.lab("L_T_R_B")
        self("s_barrier\ns_barrier")
    def fin(self):
        self.lab("L_FIN")
        if self.opt.get("stamps"):
            for w, row in ((0, 0), (8, 1), (15, 2), (7, 3), (4, 4)):
                l = self.if_cmp("eq", sWAVE, w)
                self.stamp(15, w)
                if w == 0:
                    self("s_memrealtime s[%d:%d]\ns_waitcnt lgkmcnt(0)\nv_writelane_b32 v%d, s%d, 16" % (sM0, sM0 + 1, vST, sM0))
                self("s_lshl_b32 s%d, s2, 8\ns_add_u32 s%d, s%d, %d" % (sA, sA, sA, STAMPA + row * 65536))
                self("v_lshlrev_b32 v%d, 2, v%d" % (vF, vLANE))
                self("buffer_store_dword v%d, v%d, s[%d:%d], s%d offen" % (vST, vF, srdWS, srdWS + 3, sA))
                self.lab(l)
        self.lab("L_exit")
        self("s_endpgm")

def gen(**opt):
    g = G(opt)
    g.prologue()
    g.path_A()
    g.path_B()
    g.join_pv()
    g.tail_D(); g.tail_WO(); g.tail_R(); g.fin()
    lines = hazard.resolve(g.a.lines)
    return wrap("\n".join(lines) + "\n", (256, 1, 1), (1024, 1, 1), LDS_BYTES, vgpr=128)
if __name__ == "__main__":
    import argparse
    p = argparse.ArgumentParser()
    p.add_argument("-o", default="recurrent_scan__sliding_block_cached__glu_gated_bilinear__decode.s")
    p.add_argument("--stamps", type=int, default=0)
    p.add_argument("--opt", default="")
    x = p.parse_args()
    opt = dict(stamps=x.stamps)
    for kv in x.opt.split(","):
        if kv: k, v = kv.split("="); opt[k] = int(v)
    open(x.o, "w").write(gen(**opt))
    print("written", x.o)
```

```python
import sys, struct
from asmlib import *
import hazard

EPOCH = 0
XT = 1024
QB = 4096; GB = 36864; UB = 51200; FB = 73728; SB = 274432; OB = 1048576
STAMPA = 8 << 20
QS = 131072; PS = 132096; MX = 133120; LS = 133248; GU = 133376; OA = 133888
RS = 134400; RSF = RS + 2048; RED = 138496; FLG = RED + 4096
C_S1 = FLG + 32; C_S2 = FLG + 36; C_SP = FLG + 40; C_LOC = FLG + 44; C_V1 = FLG + 48
LDS_BYTES = 163840
LOG2E = 1.4426950408889634
def f2u(x): return struct.unpack("<I", struct.pack("<f", x))[0]
C_EXP = f2u(LOG2E / 16.0)
OFMT16 = True
ROLEMAP = 4

sWAVE = 3
sX, sK, sV, sWQ, sWO, sGATE, sUP = 4, 6, 8, 10, 12, 16, 18
sDOWN, sOUT, sWS = 20, 22, 26
srdS, srdW, srdWS, srdX, srdOUT = 28, 32, 36, 40, 44
sTAG = 48; sHKV = 49; sD = 50; sROLE = 51; sIDX = 52; sKVOFF = 53
sA = 54; sBt = 55; sC = 56; sLOOP = 57; sSTRIDE = 58; sDST = 59; sDOFF = 60; sOPUB = 61; sQPOLL = 62; sLOCAL = 63
sP0 = 64
sSELLO = 96; sSELHI = 97; sM0 = 98; sP1 = 100; sP2 = 101; sP3 = 14; sP4 = 15; sDW = 24; sROT = 95; sVW = 25; sDWt = 94
R_Q, R_GU, R_D, R_WO, R_R, R_N = 0, 1, 2, 3, 4, 5

vLANE = 1; vK = 2; vV0 = 3
aQW = 2; aQA, aMXW, aMXR, aPS = 3, 4, 5, 6
vA = 7; vB = 8; vC = 9; vDo = 10; vE = 11; vF = 12; vG = 13; vH = 14; vI = 15
KR = 16; RAW = 48; DD = 80; ACC = 112; GR = 116; vL16 = 126; vST = 127
aT1, aT2, aOP, aPA, aML, aPS2 = 120, 121, 122, 123, 124, 125
DPPALL = "row_mask:0xf bank_mask:0xf"

class G:
    def __init__(self, opt):
        self.a = Asm(); self.opt = opt
    def __call__(self, s): self.a(s)
    def lab(self, n): self.a.label(n)
    def nl(self, p): return self.a.newlabel(p)
    def stamp(self, k, wave=0):
        if not self.opt.get("stamps"): return
        if self.opt.get("minst") and k not in (1, 6, 7, 15): return
        l = self.nl("L_st")
        self("s_cmp_lg_u32 s%d, %d\ns_cbranch_scc1 %s" % (sWAVE, wave, l))
        self("s_memtime s[%d:%d]\ns_waitcnt lgkmcnt(0)\nv_writelane_b32 v%d, s%d, %d" % (sM0, sM0 + 1, vST, sM0, k))
        self.lab(l)
    def srd(self, d, p, size):
        self("s_mov_b32 s%d, s%d\ns_mov_b32 s%d, s%d\ns_mov_b32 s%d, 0x%x\ns_mov_b32 s%d, 0x20000" % (d, p, d + 1, p + 1, d + 2, size, d + 3))
    def execm(self, mask):
        if mask == -1: self("s_mov_b64 exec, -1")
        elif mask <= 64: self("s_mov_b64 exec, %d" % mask)
        elif mask < (1 << 32): self("s_mov_b32 exec_lo, 0x%x\ns_mov_b32 exec_hi, 0" % mask)
        else: self("s_mov_b32 exec_lo, 0x%x\ns_mov_b32 exec_hi, 0x%x" % (mask & 0xffffffff, mask >> 32))
    def smask(self, s, mask):
        self("s_mov_b32 s%d, 0x%x\ns_mov_b32 s%d, 0x%x" % (s, mask & 0xffffffff, s + 1, mask >> 32))
    def row_allreduce(self, regs, op, steps=(8, 4, 2, 1)):
        for st in steps:
            for r in regs: self("%s_dpp v%d, v%d, v%d row_ror:%d %s" % (op, r, r, r, st, DPPALL))
    def cross16(self, regs, tmps, op):
        for r, t in zip(regs, tmps): self("v_mov_b32 v%d, v%d" % (t, r))
        for r, t in zip(regs, tmps): self("v_permlane16_swap_b32 v%d, v%d" % (r, t))
        for r, t in zip(regs, tmps): self("%s v%d, v%d, v%d" % (op, r, r, t))
    def cross32(self, regs, tmps, op):
        for r, t in zip(regs, tmps): self("v_mov_b32 v%d, v%d" % (t, r))
        for r, t in zip(regs, tmps): self("v_permlane32_swap_b32 v%d, v%d" % (r, t))
        for r, t in zip(regs, tmps): self("%s v%d, v%d, v%d" % (op, r, r, t))
    def bf16r(self, d, s):
        self("v_cvt_pk_bf16_f32 v%d, v%d, v%d\nv_lshlrev_b32 v%d, 16, v%d" % (d, s, s, d, d))
    def prio(self, p):
        if self.opt.get("prio", 1): self("s_setprio %d" % p)
    def if_cmp(self, cond, reg, val):
        inv = {"eq": "lg", "lg": "eq", "lt": "ge", "ge": "lt"}[cond]
        l = self.nl("L_if")
        self("s_cmp_%s_u32 s%d, %d\ns_cbranch_scc1 %s" % (inv, reg, val, l))
        return l
    def arrive(self, cnt):
        self("s_waitcnt lgkmcnt(0)\nv_mov_b32 v%d, %d\nv_mov_b32 v%d, 1" % (vE, cnt, vH))
        self.execm(1)
        self("ds_add_u32 v%d, v%d" % (vE, vH))
        self.execm(-1)
    def swait(self, cnt, target):
        lp = self.nl("L_sw"); dn = self.nl("L_swd")
        self("v_mov_b32 v%d, %d\ns_mov_b32 s%d, 1000000" % (vE, cnt, sLOOP))
        self.lab(lp)
        self("ds_read_b32 v%d, v%d\ns_waitcnt lgkmcnt(0)\nv_cmp_gt_u32 vcc, %d, v%d\ns_cbranch_vccz %s" % (vH, vE, target, vH, dn))
        self("s_sub_u32 s%d, s%d, 1\ns_cmp_lg_u32 s%d, 0\ns_cbranch_scc1 %s" % (sLOOP, sLOOP, sLOOP, lp))
        self.lab(dn)
    def code_prefetch(self, junk):
        self("s_getpc_b64 s[%d:%d]" % (sM0, sM0 + 1))
        pc = self.nl("L_pc")
        self.lab(pc)
        self("s_sub_u32 s%d, s%d, %s-L_kstart\ns_subb_u32 s%d, s%d, 0" % (sM0, sM0, pc, sM0 + 1, sM0 + 1))
        self("s_lshl_b32 s%d, s%d, 10" % (sA, sWAVE))
        self("v_add_u32 v%d, s%d, v%d" % (vE, sA, vL16))
        self("v_min_u32 v%d, L_exit-L_kstart-16, v%d" % (vE, vE))
        self("global_load_dwordx4 v[%d:%d], v%d, s[%d:%d]" % (junk, junk + 3, vE, sM0, sM0 + 1))
    def issue_duty(self):
        self("s_mov_b32 s%d, s%d" % (sA, sDOFF))
        for i in range(8):
            self("buffer_load_dwordx4 v[%d:%d], v%d, s[%d:%d], s%d offen nt" % (RAW + 4 * i, RAW + 4 * i + 3, vDo, srdW, srdW + 3, sA))
            if i < 7: self("s_add_u32 s%d, s%d, s%d" % (sA, sA, sSTRIDE))
    def duty_lane_addr(self):
        self("v_lshrrev_b32 v%d, 3, v%d\nv_and_b32 v%d, 7, v%d\nv_lshlrev_b32 v%d, 4, v%d" % (vE, vLANE, vDo, vLANE, vDo, vDo))
        self("s_lshl_b32 s%d, s%d, 3\nv_mul_u32_u24 v%d, s%d, v%d\nv_add_u32 v%d, v%d, v%d" % (sA, sSTRIDE, vE, sA, vE, vDo, vDo, vE))
    def duty_perm(self, BF):
        self("s_mov_b32 s%d, 0x05040100\ns_mov_b32 s%d, 0x07060302" % (sSELLO, sSELHI))
        for e in range(8):
            sel = sSELHI if e & 1 else sSELLO
            for p in range(4):
                self("v_perm_b32 v%d, v%d, v%d, s%d" % (BF + 4 * e + p, RAW + 4 * (2 * p + 1) + (e >> 1), RAW + 4 * (2 * p) + (e >> 1), sel))
    def duty_mfma(self, AFr, BF, X):
        D = RAW
        for e in range(8):
            self("v_mfma_f32_16x16x32_bf16 v[%d:%d], v[%d:%d], v[%d:%d], 0" % (D + 4 * e, D + 4 * e + 3, AFr, AFr + 3, BF + 4 * e, BF + 4 * e + 3))
        Y0, Y2, Z0, Z2 = X, X + 2, vH, vI
        for gp in range(4):
            rm = 1 << gp
            e0, e1 = 2 * gp, 2 * gp + 1
            self("v_add_f32_dpp v%d, v%d, v%d row_ror:8 row_mask:0x%x bank_mask:0x3" % (Y0, D + 4 * e0 + 1, D + 4 * e0, rm))
            self("v_add_f32_dpp v%d, v%d, v%d row_ror:8 row_mask:0x%x bank_mask:0x3" % (Y2, D + 4 * e1 + 1, D + 4 * e1, rm))
            self("v_add_f32_dpp v%d, v%d, v%d row_ror:8 row_mask:0x%x bank_mask:0xc" % (Z0, D + 4 * e0 + 2, D + 4 * e0 + 3, rm))
            self("v_add_f32_dpp v%d, v%d, v%d row_ror:8 row_mask:0x%x bank_mask:0xc" % (Z2, D + 4 * e1 + 2, D + 4 * e1 + 3, rm))
        self("v_mov_b32_dpp v%d, v%d quad_perm:[0,1,2,3] row_mask:0xf bank_mask:0xc" % (Y0, Z0))
        self("v_mov_b32_dpp v%d, v%d quad_perm:[0,1,2,3] row_mask:0xf bank_mask:0xc" % (Y2, Z2))
    def poll_scalar(self, srcs):
        nbuf = len(srcs)
        lp = self.nl("L_ps"); dn = self.nl("L_pd")
        self("s_mov_b32 s%d, %d" % (sLOOP, self.opt.get("maxpoll", 20000)))
        self.lab(lp)
        for k, (so, im) in enumerate(srcs):
            self("s_load_dwordx16 s[%d:%d], s[%d:%d], s%d offset:%d glc" % (sP0 + 16 * k, sP0 + 16 * k + 15, sWS, sWS + 1, so, im))
        self("s_waitcnt lgkmcnt(0)")
        tags = [sP0 + 1 + 2 * i for i in range(8 * nbuf)]
        self("s_and_b32 s%d, s%d, s%d\ns_or_b32 s%d, s%d, s%d" % (sBt, tags[0], tags[1], sC, tags[0], tags[1]))
        for t in tags[2:]:
            self("s_and_b32 s%d, s%d, s%d\ns_or_b32 s%d, s%d, s%d" % (sBt, sBt, t, sC, sC, t))
        self("s_xor_b32 s%d, s%d, s%d\ns_xor_b32 s%d, s%d, s%d\ns_or_b32 s%d, s%d, s%d" % (sBt, sBt, sTAG, sC, sC, sTAG, sBt, sBt, sC))
        self("s_cbranch_scc0 %s" % dn)
        self("s_sleep %d" % self.opt.get("sleep", 2))
        self("s_sub_u32 s%d, s%d, 1\ns_cmp_lg_u32 s%d, 0\ns_cbranch_scc1 %s" % (sLOOP, sLOOP, sLOOP, lp))
        self.lab(dn)
    def scalars_to_lds(self, n, vaddr):
        for i in range(n):
            self("v_writelane_b32 v%d, s%d, %d" % (vE, sP0 + 2 * i, i))
        self.execm((1 << n) - 1)
        self("ds_write_b32 v%d, v%d" % (vaddr, vE))
        self.execm(-1)
    def masked_poll(self, load, tagregs, first_wait):
        if isinstance(load, list): load = "\n".join(load)
        lp = self.nl("L_mp"); dn = self.nl("L_mpd"); ck = self.nl("L_mpc")
        self("s_mov_b32 s%d, %d" % (sLOOP, self.opt.get("maxpoll", 20000)))
        self("s_waitcnt vmcnt(%d)\ns_branch %s" % (first_wait, ck))
        self.lab(lp)
        if self.opt.get("vsleep", 1): self("s_sleep %d" % self.opt.get("vsleep", 1))
        self(load)
        self("s_waitcnt vmcnt(0)")
        self.lab(ck)
        self("v_cmp_ne_u32 vcc, s%d, v%d" % (sTAG, tagregs[0]))
        if len(tagregs) > 1:
            self("v_cmp_ne_u32 s[%d:%d], s%d, v%d" % (sM0, sM0 + 1, sTAG, tagregs[1]))
            self("s_or_b64 vcc, vcc, s[%d:%d]" % (sM0, sM0 + 1))
            self("s_cbranch_scc0 %s" % dn)
        else:
            self("s_cbranch_vccz %s" % dn)
        self("s_mov_b64 exec, vcc")
        self("s_sub_u32 s%d, s%d, 1\ns_cmp_lg_u32 s%d, 0\ns_cbranch_scc1 %s" % (sLOOP, sLOOP, sLOOP, lp))
        self.lab(dn)
        self("s_mov_b64 exec, -1")
    def tag_ready(self):
        self("s_waitcnt lgkmcnt(0)\ns_add_u32 s%d, s%d, 1" % (sTAG, sTAG))

    def common_prep(self):
        L = vLANE; t0, t1, t2 = vE, vH, vI
        self("v_lshrrev_b32 v%d, 4, v%d\nv_and_b32 v%d, 1, v%d" % (t2, L, t1, L))
        self("v_lshlrev_b32 v%d, 9, v%d\nv_lshl_add_u32 v%d, v%d, 4, v%d\nv_add_u32 v%d, %d, v%d" % (t1, t1, t1, t2, t1, aPA, PS, t1))
        self("v_and_b32 v%d, 15, v%d\nv_lshlrev_b32 v%d, 3, v%d\nv_lshl_add_u32 v%d, v%d, 16, v%d" % (t0, L, t1, t0, aOP, t2, t1))
        self("v_and_b32 v%d, 7, v%d\nv_lshlrev_b32 v%d, 3, v%d\nv_and_b32 v%d, 1, v%d\nv_lshl_add_u32 v%d, v%d, 2, v%d\nv_add_u32 v%d, %d, v%d" % (t0, L, t0, t0, t2, t2, t0, t2, t0, aML, MX, t0))
        self("v_lshrrev_b32 v%d, 2, v%d\nv_and_b32 v%d, 7, v%d\nv_xor_b32 v%d, s%d, v%d\nv_lshlrev_b32 v%d, 5, v%d" % (t0, L, t2, t0, t2, sWAVE, t2, t2, t2))
        self("v_and_b32 v%d, 8, v%d\nv_cmp_eq_u32 vcc, 0, v%d" % (t1, t1, t1) if False else "v_lshl_add_u32 v%d, v%d, 9, v%d\nv_and_b32 v%d, 3, v%d" % (t0, t0, t2, t1, L))
        self("v_lshl_add_u32 v%d, v%d, 3, v%d\nv_add_u32 v%d, 0x10000, v%d" % (aT1, t1, t0, aT2, aT1))
        self("s_lshl_b32 s%d, s%d, 3\ns_lshr_b32 s%d, s%d, 2\ns_add_u32 s%d, s%d, s%d\ns_lshl_b32 s%d, s%d, 14" % (sA, sHKV, sBt, sWAVE, sA, sA, sBt, sA, sA))
        self("s_and_b32 s%d, s%d, 1\ns_lshl_b32 s%d, s%d, 13\ns_add_u32 s%d, s%d, s%d\ns_lshr_b32 s%d, s%d, 1\ns_lshl_b32 s%d, s%d, 9\ns_add_u32 s%d, s%d, s%d" % (sBt, sD, sBt, sBt, sA, sA, sBt, sBt, sD, sBt, sBt, sA, sA, sBt))
        self("s_and_b32 s%d, s%d, 3\ns_lshl_b32 s%d, s%d, 7\ns_add_u32 s%d, s%d, s%d\ns_add_u32 s%d, s%d, %d" % (sBt, sWAVE, sBt, sBt, sA, sA, sBt, sOPUB, sA, OB))
    def role_prep(self):
        lj = self.nl("L_rp")
        l = self.if_cmp("eq", sROLE, R_D)
        self.srd(srdW, sDOWN, 1792 * 448 * 2)
        self.rowblock_setup()
        self.afrag_off(vA, GU, 7)
        self.pub_addr(vB, FB, 28 * 256, sP2)
        self("s_branch %s" % lj)
        self.lab(l)
        l = self.if_cmp("eq", sROLE, R_WO)
        self.srd(srdW, sWO, 4096 * 448 * 2)
        self.rowblock_setup()
        hO, hW, hAF, hP = vA, vC, vF, vG
        self.afrag_off(hAF, OA, 7)
        self.pub_addr(hP, SB, 64 * 256, sP3)
        self("v_and_b32 v%d, 15, v%d\nv_lshrrev_b32 v%d, 4, v%d\nv_lshlrev_b32 v%d, 4, v%d\nv_lshl_add_u32 v%d, v%d, 9, v%d"
             % (vH, vLANE, vI, vLANE, vE, vI, hO, vH, vE))
        self("s_and_b32 s%d, s%d, 1\ns_lshr_b32 s%d, s%d, 1" % (sC, sWAVE, sDST, sWAVE))
        self("s_lshl_b32 s%d, s%d, 14\ns_lshl_b32 s%d, s%d, 13\ns_add_u32 s%d, s%d, s%d\ns_lshl_b32 s%d, s%d, 6\ns_add_u32 s%d, s%d, s%d\ns_add_u32 s%d, s%d, %d"
             % (sP1, sIDX, sA, sC, sP1, sP1, sA, sA, sDST, sP1, sP1, sA, sP1, sP1, OB))
        self("s_lshl_b32 s%d, s%d, 7\ns_lshl_b32 s%d, s%d, 4\ns_add_u32 s%d, s%d, s%d\ns_add_u32 s%d, s%d, %d\nv_lshl_add_u32 v%d, v%d, 2, s%d"
             % (sA, sC, sBt, sDST, sA, sA, sBt, sA, sA, OA, hW, vI, sA))
        self("s_branch %s" % lj)
        self.lab(l)
        l = self.if_cmp("eq", sROLE, R_R)
        self.srd(srdX, sX, 1792); self.srd(srdOUT, sOUT, 1792)
        VO, aRSW, aRSR = vA, vB, vC
        self("v_bfe_u32 v%d, v%d, 4, 1\nv_mul_u32_u24 v%d, 896, v%d\nv_and_b32 v%d, 15, v%d\nv_lshl_add_u32 v%d, v%d, 1, v%d\ns_lshl_b32 s%d, s%d, 5\nv_add_u32 v%d, s%d, v%d"
             % (VO, vLANE, VO, VO, vE, vLANE, VO, vE, VO, sA, sIDX, VO, sA, VO))
        self("s_lshl_b32 s%d, s%d, 7\ns_add_u32 s%d, s%d, %d\nv_lshl_add_u32 v%d, v%d, 3, s%d" % (sA, sWAVE, sA, sA, RS, aRSW, vLANE, sA))
        self("v_and_b32 v%d, 31, v%d\nv_lshlrev_b32 v%d, 2, v%d\nv_lshrrev_b32 v%d, 5, v%d\nv_lshl_add_u32 v%d, v%d, 9, v%d\nv_add_u32 v%d, %d, v%d" % (vE, vLANE, vE, vE, vH, vLANE, aRSR, vH, vE, aRSR, RS, aRSR))
        self("s_mul_i32 s%d, s%d, %d\ns_lshl_b32 s%d, s%d, 10\ns_add_u32 s%d, s%d, s%d\ns_add_u32 s%d, s%d, %d" % (sP1, sIDX, 28 * 256, sA, sWAVE, sP1, sP1, sA, sP1, sP1, FB))
        self("s_lshl_b32 s%d, s%d, 14\ns_lshl_b32 s%d, s%d, 11\ns_add_u32 s%d, s%d, s%d\ns_add_u32 s%d, s%d, %d" % (sP2, sIDX, sA, sWAVE, sP2, sP2, sA, sP2, sP2, SB))
        self.lab(l)
        self.lab(lj)
    def rowblock_setup(self):
        self("s_sub_u32 s%d, s%d, 8" % (sDW, sWAVE))
        self("s_mov_b32 s%d, 896\ns_mul_i32 s%d, s%d, 57344\ns_lshl_b32 s%d, s%d, 7\ns_add_u32 s%d, s%d, s%d" % (sSTRIDE, sDOFF, sIDX, sA, sDW, sDOFF, sDOFF, sA))
        self.duty_lane_addr()
    def afrag_off(self, v, base, bstride_shift):
        self("v_bfe_u32 v%d, v%d, 1, 1\nv_lshlrev_b32 v%d, %d, v%d\nv_lshrrev_b32 v%d, 4, v%d\nv_lshl_add_u32 v%d, v%d, 5, v%d" % (v, vLANE, v, bstride_shift, v, vE, vLANE, v, vE, v))
        self("v_and_b32 v%d, 1, v%d\nv_lshl_add_u32 v%d, v%d, 4, v%d\nv_add_u32 v%d, %d, v%d" % (vE, vLANE, v, vE, v, v, base, v))
    def pub_addr(self, v, base, strideR, sdst):
        self("v_bfe_u32 v%d, v%d, 1, 2\nv_mul_u32_u24 v%d, %d, v%d" % (v, vLANE, v, strideR, v))
        self("v_bfe_u32 v%d, v%d, 3, 1\nv_lshl_add_u32 v%d, v%d, 7, v%d" % (vE, vLANE, v, vE, v))
        self("v_and_b32 v%d, 1, v%d\nv_lshl_add_u32 v%d, v%d, 6, v%d" % (vE, vLANE, v, vE, v))
        self("v_lshrrev_b32 v%d, 4, v%d\nv_lshl_add_u32 v%d, v%d, 4, v%d" % (vE, vLANE, v, vE, v))
        self("s_mul_i32 s%d, s%d, %d\ns_lshl_b32 s%d, s%d, 8\ns_add_u32 s%d, s%d, s%d\ns_add_u32 s%d, s%d, %d" % (sA, sDW, 4 * strideR, sdst, sIDX, sdst, sdst, sA, sdst, sdst, base))
    def if_duty_wave(self):
        l = self.nl("L_dw")
        self("s_sub_u32 s%d, s%d, 8\ns_cmp_ge_u32 s%d, 7\ns_cbranch_scc1 %s" % (sA, sWAVE, sA, l))
        return l

    def prologue(self):
        self.lab("L_kstart")
        if self.opt.get("stamps"): self("s_memtime s[92:93]")
        self("s_load_dwordx16 s[4:19], s[0:1], 0\ns_load_dwordx8 s[20:27], s[0:1], 64")
        self("v_lshrrev_b32 v%d, 6, v0\nv_and_b32 v%d, 63, v0" % (vA, vLANE))
        self("s_cmpk_ge_u32 s2, 0x100\ns_cbranch_scc1 L_exit")
        self("v_readfirstlane_b32 s%d, v%d" % (sWAVE, vA))
        self("s_and_b32 s%d, s2, 15\ns_lshl_b32 s%d, s%d, 24\ns_lshr_b32 s%d, s2, 4\ns_lshl_b32 s%d, s%d, 17\ns_or_b32 s%d, s%d, s%d" % (sA, sA, sA, sC, sBt, sC, sA, sA, sBt))
        self.prio(3)
        self("s_and_b32 s%d, s%d, 7\ns_lshl_b32 s%d, s%d, 14\ns_or_b32 s%d, s%d, s%d\ns_or_b32 s%d, s%d, 0xe00000" % (sBt, sWAVE, sBt, sBt, sA, sA, sBt, sKVOFF, sA))
        rot = self.opt.get("rot", 11)
        if "ra" in self.opt:
            ra, rb, rc = self.opt.get("ra", 1), self.opt.get("rb", 2), self.opt.get("rc", 0)
            self("s_mul_i32 s%d, s%d, %d\ns_mul_i32 s%d, s%d, %d\ns_add_u32 s%d, s%d, s%d" % (sROT, sWAVE, rb, sA, sC, ra, sROT, sROT, sA))
            if rc: self("s_and_b32 s%d, s2, 7\ns_mul_i32 s%d, s%d, %d\ns_add_u32 s%d, s%d, s%d" % (sA, sA, sA, rc, sROT, sROT, sA))
            self("s_and_b32 s%d, s%d, 15" % (sROT, sROT))
        elif rot == 11: self("s_lshl_b32 s%d, s%d, 1\ns_add_u32 s%d, s%d, s%d\ns_and_b32 s%d, s%d, 15" % (sROT, sWAVE, sROT, sROT, sC, sROT, sROT))
        elif rot == 5: self("s_and_b32 s%d, s%d, 15" % (sROT, sC))
        elif rot == 4: self("s_add_u32 s%d, s%d, s%d\ns_and_b32 s%d, s%d, 15" % (sROT, sWAVE, sC, sROT, sROT))
        else: self("s_mov_b32 s%d, 0" % sROT)
        if self.opt.get("map", 1) == 1:
            self("s_sub_u32 s%d, s2, 128\ns_cmpk_lt_u32 s%d, 56\ns_cselect_b32 s%d, 0, 2\ns_cmpk_lt_u32 s2, 64\ns_cselect_b32 s%d, 0, s%d" % (sA, sA, sROLE, sROLE, sROLE))
        else:
            nA, nB, nC = self.hv()
            lim = lambda n: 8 * n if n <= 8 else 8 * (n + 8)
            self("s_and_b32 s%d, s2, 7\ns_movk_i32 s%d, %d\ns_cmpk_ge_u32 s%d, 6\ns_cselect_b32 s%d, %d, s%d\ns_cmpk_lt_u32 s%d, 4\ns_cselect_b32 s%d, %d, s%d" % (sBt, sA, lim(nC), sBt, sA, lim(nB), sA, sBt, sA, lim(nA), sA))
            self("s_cmp_lt_u32 s2, s%d\ns_cselect_b32 s%d, 0, 2\ns_sub_u32 s%d, s2, 64\ns_cmpk_lt_u32 s%d, 64\ns_cselect_b32 s%d, 2, s%d" % (sA, sROLE, sA, sA, sROLE, sROLE))
        self("s_cmpk_lt_u32 s%d, 8\ns_cbranch_scc1 L_A" % sWAVE)
    def late_scalars(self):
        self("s_and_b32 s%d, s2, 7\ns_lshr_b32 s%d, s2, 3" % (sHKV, sD))
        self("v_lshlrev_b32 v%d, 4, v%d" % (vL16, vLANE))
    def lds_init(self):
        l = self.if_cmp("eq", sWAVE, 0)
        self("v_mov_b32 v%d, 0\nv_lshlrev_b32 v%d, 2, v%d\nv_add_u32 v%d, %d, v%d\nds_write_b32 v%d, v%d\ns_waitcnt lgkmcnt(0)" % (vB, vA, vLANE, vA, FLG, vA, vA, vB))
        self.lab(l)
    def hv(self):
        nA = self.opt.get("nA", 22); nB = self.opt.get("nB", 16); nC = (120 - 4 * nA - 2 * nB) // 2
        assert 4 * nA + 2 * nB + 2 * nC == 120 and 0 <= nC <= 24
        return nA, nB, nC
    def role_decode(self):
        e = self.nl("L_rd")
        if self.opt.get("map", 1) == 1:
            self("s_mov_b32 s%d, %d\ns_lshl_b32 s%d, s%d, 3\ns_add_u32 s%d, s%d, s%d\ns_cmp_lt_u32 s%d, 8\ns_cbranch_scc1 %s" % (sROLE, R_Q, sIDX, sHKV, sIDX, sIDX, sD, sD, e))
            self("s_mov_b32 s%d, %d\ns_sub_u32 s%d, s%d, 8\ns_cmp_lt_u32 s%d, 16\ns_cbranch_scc1 %s" % (sROLE, R_WO, sIDX, sIDX, sD, e))
            self("s_sub_u32 s%d, s%d, 16\ns_lshl_b32 s%d, s%d, 3\ns_add_u32 s%d, s%d, s%d" % (sIDX, sD, sIDX, sIDX, sIDX, sIDX, sHKV))
            self("s_mov_b32 s%d, %d\ns_cmp_lt_u32 s%d, 56\ns_cbranch_scc1 %s" % (sROLE, R_GU, sIDX, e))
            self("s_mov_b32 s%d, %d\ns_sub_u32 s%d, s%d, 56\ns_cmp_lt_u32 s%d, 28\ns_cbranch_scc1 %s" % (sROLE, R_D, sIDX, sIDX, sIDX, e))
            self("s_mov_b32 s%d, %d\ns_sub_u32 s%d, s%d, 28\ns_cmp_lt_u32 s%d, 28\ns_cbranch_scc1 %s" % (sROLE, R_R, sIDX, sIDX, sIDX, e))
            self("s_mov_b32 s%d, %d" % (sROLE, R_N))
            self.lab(e)
            return
        lh = self.nl("L_rdh"); ll = self.nl("L_rdl")
        nA, nB, nC = self.hv()
        self("s_mov_b32 s%d, %d\ns_lshl_b32 s%d, s%d, 3\ns_add_u32 s%d, s%d, s%d\ns_sub_u32 s%d, s%d, 8\ns_sub_u32 s%d, s%d, 8\ns_cmp_lt_u32 s%d, 8\ns_cbranch_scc1 %s"
             % (sROLE, R_WO, sIDX, sHKV, sIDX, sIDX, sD, sIDX, sIDX, sA, sD, sA, e))
        self("s_sub_u32 s%d, s%d, 8\ns_cmp_lt_u32 s%d, 8\ns_cselect_b32 s%d, s%d, s%d" % (sA, sD, sD, sA, sD, sA))
        hoff = [0, nA, 2 * nA, 3 * nA, 4 * nA + 2 * nB, 4 * nA + 2 * nB + nC, 4 * nA, 4 * nA + nB]
        mC, mB, mA = 24 - nC, 24 - nB, 24 - nA
        loff = [2 * mC + 2 * mB + i * mA for i in range(4)] + [0, mC, 2 * mC, 2 * mC + mB]
        nx = [nA] * 4 + [nC] * 2 + [nB] * 2
        def pk(t): return sum(v << (8 * i) for i, v in enumerate(t))
        for reg, tab in ((sBt, nx), (sIDX, hoff), (sC, loff)):
            v = pk(tab)
            self("s_mov_b32 s%d, 0x%x\ns_mov_b32 s%d, 0x%x\ns_lshl_b32 s%d, s%d, 3\ns_lshr_b64 s[%d:%d], s[%d:%d], s%d\ns_and_b32 s%d, s%d, 0xff"
                 % (sM0, v & 0xffffffff, sM0 + 1, v >> 32, sLOOP, sHKV, sM0, sM0 + 1, sM0, sM0 + 1, sLOOP, reg, sM0))
        self("s_cmp_lt_u32 s%d, s%d\ns_cbranch_scc0 %s_l" % (sA, sBt, ll))
        self("s_add_u32 s%d, s%d, s%d\ns_branch %s" % (sIDX, sIDX, sA, lh))
        self.lab(ll + "_l")
        self("s_sub_u32 s%d, s%d, s%d\ns_add_u32 s%d, s%d, s%d\ns_branch %s" % (sA, sA, sBt, sIDX, sC, sA, ll))
        self.lab(lh)
        self("s_mov_b32 s%d, %d\ns_cmp_lt_u32 s%d, 64\ns_cbranch_scc1 %s" % (sROLE, R_Q, sIDX, e))
        self("s_mov_b32 s%d, %d\ns_sub_u32 s%d, s%d, 64\ns_branch %s" % (sROLE, R_GU, sIDX, sIDX, e))
        self.lab(ll)
        self("s_mov_b32 s%d, %d\ns_cmp_lt_u32 s%d, 28\ns_cbranch_scc1 %s" % (sROLE, R_D, sIDX, e))
        self("s_mov_b32 s%d, %d\ns_sub_u32 s%d, s%d, 28\ns_cmp_lt_u32 s%d, 28\ns_cbranch_scc1 %s" % (sROLE, R_R, sIDX, sIDX, sIDX, e))
        self("s_mov_b32 s%d, %d" % (sROLE, R_N))
        self.lab(e)
    def after_karg(self):
        self("s_mov_b32 s%d, 0x10000000\ns_mov_b32 s%d, 0x20000" % (srdS + 2, srdS + 3))
        if self.opt.get("stamps"): self("s_memtime s[90:91]\nv_mov_b32 v%d, 0" % vST)
        self("s_waitcnt lgkmcnt(0)")
        if self.opt.get("stamps"): self("s_memtime s[88:89]")
    def epoch_load(self):
        self("s_load_dword s%d, s[%d:%d], 0\ns_mov_b32 s%d, 0" % (sTAG, sWS, sWS + 1, sVW))
    def stamp1(self):
        if self.opt.get("stamps"):
            l = self.if_cmp("eq", sWAVE, 0)
            self("s_memrealtime s[%d:%d]\ns_waitcnt lgkmcnt(0)\nv_writelane_b32 v%d, s%d, 0" % (sM0, sM0 + 1, vST, sM0))
            self.lab(l)
            self.stamp(1)
            self("v_writelane_b32 v%d, s92, 22\nv_writelane_b32 v%d, s90, 23\nv_writelane_b32 v%d, s88, 24\nv_writelane_b32 v%d, s88, 25" % (vST, vST, vST, vST))
    def path_A(self):
        self.lab("L_A")
        self("v_mul_u32_u24 v%d, 0x208, v%d\nv_and_b32 v%d, 0xe40, v%d\nv_and_or_b32 v%d, v%d, 48, v%d" % (vK, vLANE, vK, vK, vK, vLANE, vK))
        self("s_lshr_b32 s%d, s%d, 2\ns_lshl_b32 s%d, s%d, 12\ns_and_b32 s%d, s%d, 3\ns_lshl_b32 s%d, s%d, 7\ns_or_b32 s%d, s%d, s%d\ns_xor_b32 s%d, s%d, s%d"
             % (sA, sROT, sA, sA, sBt, sROT, sBt, sBt, sA, sA, sBt, sC, sKVOFF, sA))
        self.after_karg()
        self("s_mov_b32 s%d, s%d\ns_mov_b32 s%d, s%d" % (srdS, sK, srdS + 1, sK + 1))
        l = self.if_cmp("lt", sROLE, R_D)
        self.lds_init()
        self("s_barrier")
        self.prio(2)
        self.lab(l)
        nb = self.opt.get("nbar", 5)
        for i in range(16):
            self("s_xor_b32 s%d, s%d, %d" % (sA, sC, ((i >> 2) << 12) | ((i & 3) << 7)))
            self("buffer_load_dwordx4 v[%d:%d], v%d, s[%d:%d], s%d offen nt" % (KR + 4 * i, KR + 4 * i + 3, vK, srdS, srdS + 3, sA))
            if i == nb - 1:
                l = self.if_cmp("ge", sROLE, R_D)
                self.lds_init()
                self("s_barrier")
                self.lab(l)
        self.epoch_load()
        self.stamp1()
        self.late_scalars()
        self.stamp(2); self.stamp(2, 7); self.stamp(2, 4)
        self.srd(srdWS, sWS, 0x40000000)
        self.code_prefetch(88)
        self.prio(self.opt.get("aprio", 3))
        self.role_decode()
        self.common_prep()
        self.role_prep()
        L = vLANE; t0, t1, t2 = vE, vH, vI
        self("s_lshl_b32 s%d, s%d, 3\ns_add_u32 s%d, s%d, s%d\ns_lshl_b32 s%d, s%d, 9" % (sA, sHKV, sA, sA, sWAVE, sA, sA))
        self("s_and_b32 s%d, s%d, 1\ns_lshl_b32 s%d, s%d, 8\ns_add_u32 s%d, s%d, s%d\ns_add_u32 s%d, s%d, %d" % (sBt, sD, sBt, sBt, sA, sA, sBt, sQPOLL, sA, QB))
        self("s_lshl_b32 s%d, s%d, 7\ns_add_u32 s%d, s%d, %d\nv_lshl_add_u32 v%d, v%d, 2, s%d" % (sA, sWAVE, sA, sA, QS, aQW, L, sA))
        self("v_bfe_u32 v%d, v%d, 1, 1\nv_lshlrev_b32 v%d, 9, v%d\nv_and_b32 v%d, 1, v%d\nv_lshl_add_u32 v%d, v%d, 6, v%d" % (t0, L, t0, t0, t1, L, t0, t1, t0))
        self("v_lshrrev_b32 v%d, 4, v%d\nv_lshl_add_u32 v%d, v%d, 4, v%d\nv_add_u32 v%d, %d, v%d" % (t2, L, t0, t2, t0, aQA, QS, t0))
        self("s_lshl_b32 s%d, s%d, 3\ns_add_u32 s%d, s%d, %d\nv_mov_b32 v%d, s%d" % (sA, sWAVE, sA, sA, MX, aMXW, sA))
        self("v_and_b32 v%d, 7, v%d\nv_lshlrev_b32 v%d, 3, v%d\nv_add_u32 v%d, %d, v%d" % (t0, L, t0, t0, aMXR, MX, t0))
        self("s_lshl_b32 s%d, s%d, 6\ns_add_u32 s%d, s%d, %d" % (sA, sWAVE, sA, sA, PS))
        self("v_and_b32 v%d, 15, v%d\nv_lshrrev_b32 v%d, 2, v%d\nv_lshlrev_b32 v%d, 4, v%d\nv_and_b32 v%d, 3, v%d\nv_lshl_add_u32 v%d, v%d, 1, v%d\nv_add_u32 v%d, s%d, v%d" % (t0, L, t0, t0, t0, t0, t1, L, t0, t1, t0, aPS, sA, t0))
        self("s_bfe_u32 s%d, s%d, 0x10002\ns_lshl_b32 s%d, s%d, 5\ns_bfe_u32 s%d, s%d, 0x10003\ns_lshl_b32 s%d, s%d, 3\ns_or_b32 s%d, s%d, s%d" % (sA, sROT, sA, sA, sBt, sROT, sBt, sBt, sA, sA, sBt))
        self("v_xor_b32 v%d, s%d, v%d\nv_xor_b32 v%d, 8, v%d" % (aPS, sA, aPS, aPS2, aPS))
        self("s_and_b32 s%d, s%d, 3\ns_lshl_b32 s%d, s%d, 7\nv_xor_b32 v%d, s%d, v%d" % (sA, sROT, sA, sA, aQA, sA, aQA))
        self.tag_ready()
        l = self.if_cmp("eq", sWAVE, 7)
        self("s_getreg_b32 s%d, hwreg(HW_REG_XCC_ID, 0, 4)" % sLOCAL)
        l2 = self.if_cmp("eq", sROLE, R_WO)
        self("s_lshl_b32 s%d, s%d, 3\ns_add_u32 s%d, s%d, %d\nv_mov_b32 v%d, s%d\nv_mov_b32 v%d, s%d\nv_mov_b32 v%d, 0" % (sA, sIDX, sA, sA, XT, GR, sLOCAL, GR + 1, sTAG, vE))
        self.execm(1)
        self("buffer_store_dwordx2 v[%d:%d], v%d, s[%d:%d], s%d offen sc1" % (GR, GR + 1, vE, srdWS, srdWS + 3, sA))
        self.execm(-1)
        self.lab(l2)
        self.lab(l)
        if self.opt.get("kfirst", 1): self("s_waitcnt vmcnt(0)")
        self.stamp(14, 0); self.stamp(14, 7); self.stamp(14, 4)
        self.poll_scalar([(sQPOLL, 0), (sQPOLL, 64)])
        self.scalars_to_lds(16, aQW)
        self("v_add_u32 v%d, 64, v%d" % (aQW, aQW))
        self.poll_scalar([(sQPOLL, 128), (sQPOLL, 192)])
        self.stamp(3)
        self.scalars_to_lds(16, aQW)
        self.arrive(C_S1)
        self.swait(C_S1, 8)
        QA = DD + 16
        self("ds_read_b128 v[%d:%d], v%d" % (QA, QA + 3, aQA))
        for t in range(1, 4):
            self("v_xor_b32 v%d, %d, v%d\nds_read_b128 v[%d:%d], v%d" % (vH, t * 128, aQA, QA + 4 * t, QA + 4 * t + 3, vH))
        self("s_waitcnt vmcnt(0) lgkmcnt(0)")
        self.stamp(4)
        for t in range(4):
            for c in range(4):
                D = DD + 4 * c
                self("v_mfma_f32_16x16x32_bf16 v[%d:%d], v[%d:%d], v[%d:%d], %s" % (D, D + 3, QA + 4 * t, QA + 4 * t + 3, KR + 16 * c + 4 * t, KR + 16 * c + 4 * t + 3, "0" if t == 0 else "v[%d:%d]" % (D, D + 3)))
        F = ACC
        for o2 in range(2):
            for h in range(2):
                self("v_add_f32_dpp v%d, v%d, v%d row_ror:8 row_mask:0xf bank_mask:0x3" % (F + 2 * o2 + h, DD + 8 * o2 + 2 * h + 1, DD + 8 * o2 + 2 * h))
        for o2 in range(2):
            for h in range(2):
                self("v_add_f32_dpp v%d, v%d, v%d row_ror:8 row_mask:0xf bank_mask:0xc" % (F + 2 * o2 + h, DD + 8 * o2 + 4 + 2 * h, DD + 8 * o2 + 4 + 2 * h + 1))
        self("v_cvt_pk_bf16_f32 v%d, v%d, v%d\nv_cvt_pk_bf16_f32 v%d, v%d, v%d" % (QA, F, F + 1, QA + 1, F + 2, F + 3))
        self("v_lshlrev_b32 v%d, 16, v%d\nv_and_b32 v%d, 0xffff0000, v%d\nv_lshlrev_b32 v%d, 16, v%d\nv_and_b32 v%d, 0xffff0000, v%d" % (F, QA, F + 1, QA, F + 2, QA + 1, F + 3, QA + 1))
        M0, M1 = GR, GR + 1
        self("v_max_f32 v%d, v%d, v%d\nv_max_f32 v%d, v%d, v%d" % (M0, F, F + 2, M1, F + 1, F + 3))
        self.row_allreduce([M0, M1], "v_max_f32")
        self.execm(1)
        self("ds_write_b64 v%d, v[%d:%d]" % (aMXW, M0, M1))
        self.execm(-1)
        self.arrive(C_S2)
        self.swait(C_S2, 8)
        self("ds_read_b64 v[%d:%d], v%d\ns_waitcnt lgkmcnt(0)" % (M0, M1, aMXR))
        self.row_allreduce([M0, M1], "v_max_f32", (4, 2, 1))
        P = QA + 4
        for k in range(4): self("v_sub_f32 v%d, v%d, v%d" % (P + k, F + k, M0 + (k & 1)))
        for k in range(4): self("v_mul_f32 v%d, 0x%x, v%d" % (P + k, C_EXP, P + k))
        for k in range(4): self("v_exp_f32 v%d, v%d" % (P + k, P + k))
        self("v_cvt_pk_bf16_f32 v%d, v%d, v%d\nv_cvt_pk_bf16_f32 v%d, v%d, v%d" % (QA, P, P + 1, QA + 1, P + 2, P + 3))
        S0, S1 = QA + 8, QA + 9
        self("v_add_f32 v%d, v%d, v%d\nv_add_f32 v%d, v%d, v%d" % (S0, P, P + 2, S1, P + 1, P + 3))
        self.execm(0xFFFF)
        self("ds_write_b16 v%d, v%d\nds_write_b16_d16_hi v%d, v%d offset:512\nds_write_b16 v%d, v%d\nds_write_b16_d16_hi v%d, v%d offset:512" % (aPS, QA, aPS, QA, aPS2, QA + 1, aPS2, QA + 1))
        self.execm(-1)
        self.row_allreduce([S0, S1], "v_add_f32")
        self.execm(1)
        self("ds_write_b64 v%d, v[%d:%d] offset:%d" % (aMXW, S0, S1, LS - MX))
        self.execm(-1)
        l = self.if_cmp("eq", sROLE, R_D)
        self("s_lshl_b32 s%d, s%d, 9\ns_lshl_b32 s%d, s%d, 6\ns_add_u32 s%d, s%d, s%d\ns_add_u32 s%d, s%d, %d\ns_add_u32 s%d, s%d, %d" % (sA, sIDX, sBt, sWAVE, sA, sA, sBt, sP4, sA, UB, sQPOLL, sA, GB))
        self("v_and_b32 v%d, 7, v%d\nv_lshlrev_b32 v%d, 2, v%d\nv_bfe_u32 v%d, v%d, 3, 1\nv_lshl_add_u32 v%d, v%d, 8, v%d\ns_lshl_b32 s%d, s%d, 5\ns_add_u32 s%d, s%d, %d\nv_add_u32 v%d, s%d, v%d"
             % (aQW, vLANE, aQW, aQW, vI, vLANE, aQW, vI, aQW, sA, sWAVE, sA, sA, GU, aQW, sA, aQW))
        self.poll_scalar([(sQPOLL, 0), (sP4, 0)])
        self.scalars_to_lds(16, aQW)
        self.lab(l)
        if self.opt.get("local", 1):
            l = self.if_cmp("eq", sWAVE, 7)
            self("s_lshl_b32 s%d, s%d, 6\ns_add_u32 s%d, s%d, %d" % (sQPOLL, sHKV, sQPOLL, sQPOLL, XT))
            self.poll_scalar([(sQPOLL, 0)])
            self("s_xor_b32 s%d, s%d, s%d" % (sC, sP0, sLOCAL))
            for i in range(1, 8): self("s_xor_b32 s%d, s%d, s%d\ns_or_b32 s%d, s%d, s%d" % (sBt, sP0 + 2 * i, sLOCAL, sC, sC, sBt))
            self("s_cmp_eq_u32 s%d, 0\ns_cselect_b32 s%d, 1, 0\ns_cmp_eq_u32 s%d, s%d\ns_cselect_b32 s%d, s%d, 0" % (sC, sC, sP0 + 1, sTAG, sC, sC))
            self("v_mov_b32 v%d, %d\nv_mov_b32 v%d, s%d" % (vE, C_LOC, vH, sC))
            self.execm(1)
            self("ds_write_b32 v%d, v%d" % (vE, vH))
            self.execm(-1)
            self.lab(l)
        self.stamp(5)
        self.arrive(C_SP)
        self("s_branch L_JOIN")
    def v_addr(self):
        self("v_lshrrev_b32 v%d, 5, v%d\nv_and_b32 v%d, 31, v%d\nv_lshlrev_b32 v%d, 1, v%d\nv_xor_b32 v%d, v%d, v%d" % (vA, vLANE, vB, vLANE, vC, vA, vB, vB, vC))
        self("v_lshlrev_b32 v%d, 4, v%d\nv_lshl_add_u32 v%d, v%d, 9, v%d" % (vB, vB, vV0, vA, vB))
        self("s_and_b32 s%d, s%d, 3\ns_lshl_b32 s%d, s%d, 6\nv_xor_b32 v%d, s%d, v%d" % (sA, sROT, sA, sA, vV0, sA, vV0))
        self("v_xor_b32 v%d, 64, v%d\nv_xor_b32 v%d, 0x80, v%d\nv_xor_b32 v%d, 0xc0, v%d" % (vV0 + 1, vV0, vV0 + 2, vV0, vV0 + 3, vV0))
        self("s_and_b32 s%d, s%d, 7\ns_lshl_b32 s%d, s%d, 14\ns_lshl_b32 s%d, s%d, 10\ns_xor_b32 s%d, s%d, s%d\ns_xor_b32 s%d, s%d, s%d" % (sP1, sWAVE, sP1, sP1, sA, sROT, sP1, sP1, sA, sP2, sKVOFF, sA))
        self("s_mov_b32 s%d, 0x10000000\ns_mov_b32 s%d, 0x20000" % (srdS + 2, srdS + 3))
    def path_B(self):
        self.lab("L_B")
        self("s_mov_b32 s%d, 0" % sLOCAL)
        self("s_cmp_ge_u32 s%d, %d\ns_cbranch_scc1 L_B_light" % (sROLE, R_D))
        self("s_cmpk_eq_u32 s%d, 15\ns_cbranch_scc1 L_B_nod" % sWAVE)
        self("s_sub_u32 s%d, s%d, 8" % (sDWt, sWAVE))
        self("v_lshrrev_b32 v%d, 3, v%d\nv_and_b32 v%d, 7, v%d\nv_lshlrev_b32 v%d, 4, v%d" % (vE, vLANE, vDo, vLANE, vDo, vDo))
        self("s_cmpk_lt_u32 s2, 64\ns_cbranch_scc0 L_B_gu")
        self("s_and_b32 s%d, s2, 7\ns_lshl_b32 s%d, s%d, 3\ns_lshr_b32 s%d, s2, 3\ns_add_u32 s%d, s%d, s%d" % (sIDX, sIDX, sIDX, sA, sIDX, sIDX, sA))
        self("s_movk_i32 s%d, 0x2000\ns_mov_b32 s%d, 0x%x\ns_lshl_b32 s%d, s%d, 9\ns_add_u32 s%d, s%d, %d" % (sSTRIDE, srdW + 2, 448 * 4096 * 2, sDST, sIDX, sDST, sDST, QB))
        self("s_waitcnt lgkmcnt(0)\ns_mov_b32 s%d, s%d\ns_mov_b32 s%d, s%d\ns_branch L_B_d" % (srdW, sWQ, srdW + 1, sWQ + 1))
        self.lab("L_B_gu")
        self("s_sub_u32 s%d, s2, 128\ns_movk_i32 s%d, 0xe00\ns_mov_b32 s%d, 0x%x" % (sIDX, sSTRIDE, srdW + 2, 448 * 1792 * 2))
        self("s_waitcnt lgkmcnt(0)\ns_mov_b32 s%d, s%d\ns_mov_b32 s%d, s%d\ns_mov_b32 s%d, %d\ns_cmpk_lt_u32 s%d, 28\ns_cbranch_scc1 L_B_g" % (srdW, sGATE, srdW + 1, sGATE + 1, sDST, GB, sIDX))
        self("s_mov_b32 s%d, s%d\ns_mov_b32 s%d, s%d\ns_sub_u32 s%d, s%d, 28\ns_mov_b32 s%d, %d" % (srdW, sUP, srdW + 1, sUP + 1, sIDX, sIDX, sDST, UB))
        self.lab("L_B_g")
        self("s_lshl_b32 s%d, s%d, 9\ns_add_u32 s%d, s%d, s%d" % (sA, sIDX, sDST, sDST, sA))
        self.lab("L_B_d")
        self("s_mov_b32 s%d, 0x20000" % (srdW + 3))
        self("s_lshl_b32 s%d, s%d, 3\nv_mul_u32_u24 v%d, s%d, v%d\nv_add_u32 v%d, v%d, v%d" % (sA, sSTRIDE, vE, sA, vE, vDo, vDo, vE))
        self("s_lshl_b32 s%d, s%d, 6\ns_mul_i32 s%d, s%d, s%d\ns_lshl_b32 s%d, s%d, 7\ns_add_u32 s%d, s%d, s%d" % (sA, sDWt, sA, sA, sSTRIDE, sDOFF, sIDX, sDOFF, sDOFF, sA))
        if self.opt.get("stamps"): self("v_mov_b32 v%d, 0" % vST)
        self.issue_duty()
        self("s_mov_b32 s%d, s%d" % (sDW, sDWt))
        self.srd(srdX, sX, 1792)
        XR = DD; XA = DD + 12
        self("v_lshrrev_b32 v%d, 5, v%d\nv_mul_u32_u24 v%d, 896, v%d\nv_and_b32 v%d, 31, v%d\nv_lshl_add_u32 v%d, v%d, 5, v%d" % (vA, vLANE, vA, vA, vC, vLANE, vB, vC, vA))
        self("v_cmp_le_u32 vcc, 28, v%d\nv_mov_b32 v%d, 0x10000000\nv_cndmask_b32 v%d, v%d, v%d, vcc" % (vC, vC, vB, vB, vC))
        self("buffer_load_dwordx4 v[%d:%d], v%d, s[%d:%d], 0 offen\nbuffer_load_dwordx4 v[%d:%d], v%d, s[%d:%d], 0 offen offset:16" % (XR, XR + 3, vB, srdX, srdX + 3, XR + 4, XR + 7, vB, srdX, srdX + 3))
        self("v_bfe_u32 v%d, v%d, 1, 1\nv_mul_u32_u24 v%d, 896, v%d\nv_lshrrev_b32 v%d, 4, v%d\nv_lshl_add_u32 v%d, v%d, 5, v%d" % (vA, vLANE, vA, vA, vC, vLANE, vA, vC, vA))
        self("v_and_b32 v%d, 1, v%d\nv_lshl_add_u32 v%d, v%d, 4, v%d\ns_lshl_b32 s%d, s%d, 7" % (vC, vLANE, vA, vC, vA, sA, sDW))
        self("buffer_load_dwordx4 v[%d:%d], v%d, s[%d:%d], s%d offen" % (XA, XA + 3, vA, srdX, srdX + 3, sA))
        self("s_barrier\ns_branch L_B2")
        self.path_A()
        self.lab("L_B2")
        self.epoch_load()
        self.v_addr()
        self.late_scalars()
        self.srd(srdWS, sWS, 0x40000000)
        self.stamp(2, 8)
        FX = DD + 16
        self("s_waitcnt vmcnt(0)")
        for i in range(8):
            self("v_lshlrev_b32 v%d, 16, v%d\nv_and_b32 v%d, 0xffff0000, v%d" % (FX + 2 * i, XR + i, FX + 2 * i + 1, XR + i))
        S = 116; T = 117; U2 = 118; W2 = 119
        self("v_add_f32 v%d, v%d, v%d\nv_add_f32 v%d, v%d, v%d\nv_add_f32 v%d, v%d, v%d\nv_add_f32 v%d, v%d, v%d" % (S, FX, FX + 1, T, FX + 2, FX + 3, U2, FX + 4, FX + 5, W2, FX + 6, FX + 7))
        for k, r in enumerate((S, T, U2, W2)): self("v_add_f32 v%d, v%d, v%d" % (r, r, FX + 8 + 2 * k))
        for k, r in enumerate((S, T, U2, W2)): self("v_add_f32 v%d, v%d, v%d" % (r, r, FX + 9 + 2 * k))
        self("v_add_f32 v%d, v%d, v%d\nv_add_f32 v%d, v%d, v%d\nv_add_f32 v%d, v%d, v%d" % (S, S, T, U2, U2, W2, S, S, U2))
        self.row_allreduce([S], "v_add_f32"); self.cross16([S], [T], "v_add_f32")
        self("v_mul_f32 v%d, 0x%x, v%d" % (S, f2u(1.0 / 448), S))
        for i in range(16): self("v_sub_f32 v%d, v%d, v%d" % (FX + i, FX + i, S))
        self("v_mul_f32 v%d, v%d, v%d\nv_mul_f32 v%d, v%d, v%d\nv_mul_f32 v%d, v%d, v%d\nv_mul_f32 v%d, v%d, v%d" % (T, FX, FX, U2, FX + 1, FX + 1, W2, FX + 2, FX + 2, vE, FX + 3, FX + 3))
        for i in range(4, 16): self("v_fmac_f32 v%d, v%d, v%d" % ((T, U2, W2, vE)[i % 4], FX + i, FX + i))
        self("v_add_f32 v%d, v%d, v%d\nv_add_f32 v%d, v%d, v%d\nv_add_f32 v%d, v%d, v%d" % (T, T, U2, W2, W2, vE, T, T, W2))
        self.smask(sM0, 0x0FFFFFFF0FFFFFFF)
        self("v_cndmask_b32 v%d, 0, v%d, s[%d:%d]" % (T, T, sM0, sM0 + 1))
        self.row_allreduce([T], "v_add_f32"); self.cross16([T], [U2], "v_add_f32")
        self("v_mul_f32 v%d, 0x%x, v%d" % (T, f2u(1.0 / 448), T))
        self.bf16r(S, S); self.bf16r(T, T)
        self("v_add_f32 v%d, 0x%x, v%d" % (T, f2u(1e-5), T))
        self.bf16r(T, T)
        self("v_sqrt_f32 v%d, v%d" % (T, T))
        self.bf16r(T, T)
        self("v_mov_b32 v%d, v%d\nv_mov_b32 v%d, v%d" % (U2, S, W2, T))
        self("v_permlane32_swap_b32 v%d, v%d\nv_permlane32_swap_b32 v%d, v%d" % (S, U2, T, W2))
        self.smask(sM0, 0xCCCCCCCCCCCCCCCC)
        self("v_cndmask_b32 v%d, v%d, v%d, s[%d:%d]\nv_cndmask_b32 v%d, v%d, v%d, s[%d:%d]" % (S, S, U2, sM0, sM0 + 1, T, T, W2, sM0, sM0 + 1))
        self("v_rcp_f32 v%d, v%d" % (U2, T))
        E = FX
        for k in range(4): self("v_lshlrev_b32 v%d, 16, v%d\nv_and_b32 v%d, 0xffff0000, v%d" % (E + 2 * k, XA + k, E + 2 * k + 1, XA + k))
        for k in range(8): self("v_sub_f32 v%d, v%d, v%d" % (E + k, E + k, S))
        for k in range(4): self("v_cvt_pk_bf16_f32 v%d, v%d, v%d" % (XA + k, E + 2 * k, E + 2 * k + 1))
        for k in range(4): self("v_lshlrev_b32 v%d, 16, v%d\nv_and_b32 v%d, 0xffff0000, v%d" % (E + 2 * k, XA + k, E + 2 * k + 1, XA + k))
        for k in range(8): self("v_mul_f32 v%d, v%d, v%d" % (E + 8 + k, E + k, U2))
        for k in range(8): self("v_fma_f32 v%d, -v%d, v%d, v%d" % (XR + k, E + 8 + k, T, E + k))
        for k in range(8): self("v_fmac_f32 v%d, v%d, v%d" % (E + 8 + k, XR + k, U2))
        AFq = ACC
        for k in range(4): self("v_cvt_pk_bf16_f32 v%d, v%d, v%d" % (AFq + k, E + 8 + 2 * k, E + 9 + 2 * k))
        self("v_bfe_u32 v%d, v%d, 3, 1\nv_lshlrev_b32 v%d, 8, v%d\nv_and_b32 v%d, 7, v%d\nv_lshl_add_u32 v%d, v%d, 5, v%d\nv_lshrrev_b32 v%d, 4, v%d\nv_lshl_add_u32 v%d, v%d, 3, v%d"
             % (vF, vLANE, vF, vF, vG, vLANE, vF, vG, vF, vG, vLANE, vF, vG, vF))
        self("s_lshl_b32 s%d, s%d, 9\ns_add_u32 s%d, s%d, %d\nv_add_u32 v%d, s%d, v%d" % (sA, sDW, sA, sA, RED, vF, sA, vF))
        self("s_waitcnt vmcnt(0)")
        self.stamp(11, 8)
        self.duty_perm(DD)
        self.duty_mfma(AFq, DD, GR)
        self("v_mov_b32 v%d, v%d" % (GR + 1, GR + 2))
        self("ds_write_b64 v%d, v[%d:%d]" % (vF, GR, GR + 1))
        self.tag_ready()
        self("s_mov_b32 s%d, 1" % sLOCAL)
        self("s_lshl_b32 s%d, s%d, 2\ns_add_u32 s%d, s%d, %d\nv_mov_b32 v%d, s%d\nv_mov_b32 v%d, 1" % (sA, sDW, sA, sA, FLG, vF, sA, vG))
        self.execm(1)
        self("ds_write_b32 v%d, v%d" % (vF, vG))
        self.execm(-1)
        l = self.if_cmp("eq", sWAVE, 8)
        lp = self.nl("L_flg"); dn = self.nl("L_flgd")
        self("v_min_u32 v%d, 6, v%d\nv_lshlrev_b32 v%d, 2, v%d\nv_add_u32 v%d, %d, v%d" % (vF, vLANE, vF, vF, vF, FLG, vF))
        self("s_mov_b32 s%d, %d" % (sLOOP, 1000000))
        self.lab(lp)
        self("ds_read_b32 v%d, v%d\ns_waitcnt lgkmcnt(0)\nv_cmp_ne_u32 vcc, 1, v%d\ns_cbranch_vccz %s" % (vG, vF, vG, dn))
        self("s_sub_u32 s%d, s%d, 1\ns_cmp_lg_u32 s%d, 0\ns_cbranch_scc1 %s" % (sLOOP, sLOOP, sLOOP, lp))
        self.lab(dn)
        self("v_lshlrev_b32 v%d, 3, v%d\nv_add_u32 v%d, %d, v%d" % (vG, vLANE, vF, RED, vG))
        for k in range(7): self("ds_read_b64 v[%d:%d], v%d offset:%d" % (DD + 2 * k, DD + 2 * k + 1, vF, k * 512))
        self("s_waitcnt lgkmcnt(0)")
        for (d, s_) in ((0, 2), (4, 6), (8, 10), (0, 4), (8, 12), (0, 8)):
            self("v_add_f32 v%d, v%d, v%d\nv_add_f32 v%d, v%d, v%d" % (DD + d, DD + d, DD + s_, DD + d + 1, DD + d + 1, DD + s_ + 1))
        self("v_cvt_pk_bf16_f32 v%d, v%d, v%d\nv_mov_b32 v%d, s%d" % (GR, DD, DD + 1, GR + 1, sTAG))
        self("buffer_store_dwordx2 v[%d:%d], v%d, s[%d:%d], s%d offen sc1" % (GR, GR + 1, vG, srdWS, srdWS + 3, sDST))
        self.lab(l)
        self.stamp(8, 8)
        self("s_mov_b32 s%d, s%d\ns_mov_b32 s%d, s%d" % (srdS, sV, srdS + 1, sV + 1))
        self("s_branch L_B_v2")
        self.lab("L_B_nod")
        self.v_addr()
        if self.opt.get("stamps"): self("v_mov_b32 v%d, 0" % vST)
        self("s_waitcnt lgkmcnt(0)\ns_mov_b32 s%d, s%d\ns_mov_b32 s%d, s%d" % (srdS, sV, srdS + 1, sV + 1))
        self("s_barrier")
        self.epoch_load()
        self("s_branch L_B_v2")
        self.lab("L_B_light")
        if self.opt.get("bbar0", 1): self("s_barrier")
        self.v_addr()
        if self.opt.get("stamps"): self("v_mov_b32 v%d, 0" % vST)
        self("s_waitcnt lgkmcnt(0)\ns_mov_b32 s%d, s%d\ns_mov_b32 s%d, s%d" % (srdS, sV, srdS + 1, sV + 1))
        self.lab("L_B_v2")
        self.prio(1)
        thr = self.opt.get("thr", 2)
        def vload(i):
            self("s_xor_b32 m0, s%d, %d\ns_xor_b32 s%d, s%d, %d" % (sP1, i * 1024, sA, sP2, i * 1024))
            self("buffer_load_dwordx4 v%d, s[%d:%d], s%d offen nt lds" % (vV0 + (i % 4), srdS, srdS + 3, sA))
        for i in range(16):
            if thr and i >= max(thr, 4):
                l = self.nl("L_thr")
                self("s_cmpk_lt_u32 s%d, %d\ns_cbranch_scc1 %s\ns_waitcnt vmcnt(%d)" % (sROLE, R_R, l, thr - 1))
                self.lab(l)
            thr2 = self.opt.get("thr2", 0)
            if thr2 and i >= max(thr2, 4):
                l = self.nl("L_thr"); l2 = self.nl("L_thr")
                self("s_sub_u32 s%d, s2, 64\ns_cmpk_lt_u32 s%d, 64\ns_cbranch_scc1 %s\ns_sub_u32 s%d, s2, 184\ns_cmpk_lt_u32 s%d, 28\ns_cbranch_scc0 %s" % (sA, sA, l2, sA, sA, l))
                self.lab(l2)
                self("s_waitcnt vmcnt(%d)" % (thr2 - 1))
                self.lab(l)
            vload(i)
            if i == 1:
                l = self.if_cmp("ge", sROLE, R_D)
                if not self.opt.get("bbar0", 1): self("s_barrier")
                self.epoch_load()
                self.lab(l)
                self.late_scalars()
                self.role_decode()
            if i == self.opt.get("bprep", 3):
                self.late_scalars()
                self.code_prefetch(RAW)
        self.stamp(2, 15); self.stamp(2, 8) if False else None; self.stamp(12, 8);
        self.srd(srdWS, sWS, 0x40000000)
        self.role_decode()
        l = self.nl("L_tg")
        self("s_cmp_eq_u32 s%d, 1\ns_cbranch_scc1 %s" % (sLOCAL, l))
        self.tag_ready()
        self.lab(l)
        if not self.opt.get("dlate", 0):
            self.role_prep()
            l = self.nl("L_nld")
            if self.opt.get("dlateD", 0): self("s_cmp_lg_u32 s%d, %d\ns_cbranch_scc1 %s" % (sROLE, R_WO, l))
            else: self("s_sub_u32 s%d, s%d, %d\ns_cmp_ge_u32 s%d, 2\ns_cbranch_scc1 %s" % (sA, sROLE, R_D, sA, l))
            self("s_cmp_eq_u32 s%d, 15\ns_cbranch_scc1 %s" % (sWAVE, l))
            self.prio(0)
            self.issue_duty()
            self("s_mov_b32 s%d, 8" % sVW)
            self.lab(l)
            self.common_prep()
        else:
            self.common_prep()
            self.role_prep()
    def vwait(self):
        if self.opt.get("dlate", 0):
            self("s_waitcnt vmcnt(0)"); return
        l1 = self.nl("L_vw"); l2 = self.nl("L_vw")
        self("s_cmp_eq_u32 s%d, 8\ns_cbranch_scc1 %s\ns_waitcnt vmcnt(0)\ns_branch %s" % (sVW, l1, l2))
        self.lab(l1)
        self("s_waitcnt vmcnt(8)")
        self.lab(l2)
    def join_pv(self):
        self.lab("L_JOIN")
        self.swait(C_SP, 8)
        for T in range(8):
            self("ds_read_b128 v[%d:%d], v%d offset:%d" % (KR + 4 * T, KR + 4 * T + 3, aPA, T * 64))
        self("ds_read_b32 v%d, v%d\nds_read_b32 v%d, v%d offset:%d" % (GR, aML, GR + 2, aML, LS - MX))
        self("v_mov_b32 v%d, %d\nds_read_b32 v%d, v%d" % (vE, C_LOC, vH, vE))
        self("v_mov_b32 v%d, s%d" % (GR + 3, sTAG))
        self("s_waitcnt lgkmcnt(0)")
        self("v_readfirstlane_b32 s%d, v%d" % (sLOCAL, vH))
        for st in (4, 2, 1):
            self("v_max_f32_dpp v%d, v%d, v%d row_ror:%d %s\nv_add_f32_dpp v%d, v%d, v%d row_ror:%d %s" % (GR, GR, GR, st, DPPALL, GR + 2, GR + 2, GR + 2, st, DPPALL))
        self.smask(sM0, 0xCCCCCCCCCCCCCCCC)
        self("v_cndmask_b32 v%d, v%d, v%d, s[%d:%d]" % (GR + 2, GR, GR + 2, sM0, sM0 + 1))
        self.stamp(13)
        VB = DD
        def pv_stage(T0, T1):
            n = T1 - T0
            for T in range(T0, T1):
                base = aT1 if T < 4 else aT2
                o = (T % 4) * 16384
                self("ds_read_b64_tr_b16 v[%d:%d], v%d offset:%d" % (VB + 4 * T, VB + 4 * T + 1, base, o))
                self("ds_read_b64_tr_b16 v[%d:%d], v%d offset:%d" % (VB + 4 * T + 2, VB + 4 * T + 3, base, o + 8192))
            for T in range(T0, T1):
                self("s_waitcnt lgkmcnt(%d)" % (2 * (T1 - 1 - T)))
                self("v_mfma_f32_16x16x32_bf16 v[%d:%d], v[%d:%d], v[%d:%d], %s" % (ACC, ACC + 3, KR + 4 * T, KR + 4 * T + 3, VB + 4 * T, VB + 4 * T + 3, "0" if T == 0 else "v[%d:%d]" % (ACC, ACC + 3)))
        if self.opt.get("pv2", 1):
            l = self.nl("L_cv")
            self("s_sub_u32 s%d, s%d, 8\ns_cmp_ge_u32 s%d, 4\ns_cbranch_scc1 %s" % (sA, sWAVE, sA, l))
            self.vwait()
            self.arrive(C_V1)
            self.lab(l)
            self.swait(C_V1, 4)
            pv_stage(0, 4)
            self.vwait()
            self("s_barrier")
            self.stamp(6)
            pv_stage(4, 8)
        else:
            self.vwait()
            self("s_barrier")
            self.stamp(6)
            pv_stage(0, 8)
        self("v_permlane16_swap_b32 v%d, v%d" % (ACC, ACC + 1))
        self("v_mov_b32 v%d, v%d" % (GR, ACC))
        self("v_mov_b32_dpp v%d, v%d quad_perm:[1,0,3,2] %s" % (GR + 1, ACC, DPPALL))
        self.execm(0x55555555)
        if self.opt.get("local", 1):
            l1 = self.nl("L_loc"); l2 = self.nl("L_loc")
            self("s_cmp_eq_u32 s%d, 1\ns_cbranch_scc1 %s" % (sLOCAL, l1))
            self("buffer_store_dwordx4 v[%d:%d], v%d, s[%d:%d], s%d offen sc1" % (GR, GR + 3, aOP, srdWS, srdWS + 3, sOPUB))
            self("s_branch %s" % l2)
            self.lab(l1)
            self("buffer_store_dwordx4 v[%d:%d], v%d, s[%d:%d], s%d offen %s" % (GR, GR + 3, aOP, srdWS, srdWS + 3, sOPUB, {0: "", 1: "nt", 2: "sc0"}[self.opt.get("lpol", 0)]))
            self.lab(l2)
        else:
            self("buffer_store_dwordx4 v[%d:%d], v%d, s[%d:%d], s%d offen sc1" % (GR, GR + 3, aOP, srdWS, srdWS + 3, sOPUB))
        self.execm(-1)
        self.stamp(7); self.stamp(7, 15)
        if self.opt.get("stamps"): self("v_writelane_b32 v%d, s%d, 20" % (vST, sLOCAL))
        self("s_cmp_eq_u32 s%d, %d\ns_cbranch_scc1 L_T_WO" % (sROLE, R_WO))
        self("s_cmp_eq_u32 s%d, %d\ns_cbranch_scc1 L_T_R" % (sROLE, R_R))
        self("s_cmp_eq_u32 s%d, %d\ns_cbranch_scc1 L_T_D" % (sROLE, R_D))
        self("s_branch L_FIN")
    def tail_D(self):
        self.lab("L_T_D")
        l = self.if_duty_wave()
        if self.opt.get("dlate", 0) or self.opt.get("dlateD", 0): self.issue_duty()
        Gr = DD; Ur = DD + 4; H = DD + 8
        self("ds_read_b128 v[%d:%d], v%d\nds_read_b128 v[%d:%d], v%d offset:256" % (Gr, Gr + 3, vA, Ur, Ur + 3, vA))
        self("s_waitcnt lgkmcnt(0)")
        for k in range(4):
            self("v_lshlrev_b32 v%d, 16, v%d\nv_and_b32 v%d, 0xffff0000, v%d\nv_lshlrev_b32 v%d, 16, v%d\nv_and_b32 v%d, 0xffff0000, v%d" % (H + 2 * k, Gr + k, H + 2 * k + 1, Gr + k, H + 8 + 2 * k, Ur + k, H + 9 + 2 * k, Ur + k))
        for k in range(8): self("v_mul_f32 v%d, v%d, v%d" % (H + k, H + k, H + 8 + k))
        for k in range(4): self("v_cvt_pk_bf16_f32 v%d, v%d, v%d" % (ACC + k, H + 2 * k, H + 2 * k + 1))
        self("v_mov_b32 v%d, s%d\nv_mov_b32 v%d, s%d" % (GR + 1, sTAG, GR + 3, sTAG))
        self("s_waitcnt vmcnt(0)")
        self.duty_perm(KR)
        self.duty_mfma(ACC, KR, GR)
        self("buffer_store_dwordx4 v[%d:%d], v%d, s[%d:%d], s%d offen sc1" % (GR, GR + 3, vB, srdWS, srdWS + 3, sP2))
        self.lab(l)
        self.stamp(8)
        self("s_branch L_FIN")
    def tail_WO(self):
        self.lab("L_T_WO")
        hO, hW, hAF, hP = vA, vC, vF, vG
        OD = DD; OE = DD + 4
        ldO = ["buffer_load_dwordx4 v[%d:%d], v%d, s[%d:%d], s%d offen sc1" % (OD, OD + 3, hO, srdWS, srdWS + 3, sP1),
               "buffer_load_dwordx4 v[%d:%d], v%d, s[%d:%d], s%d offen offset:256 sc1" % (OE, OE + 3, hO, srdWS, srdWS + 3, sP1)]
        self("s_cmp_ge_u32 s%d, 8\ns_cbranch_scc1 L_T_WO_B" % sWAVE)
        self(ldO[0]); self(ldO[1])
        self.masked_poll(ldO, [OD + 3, OE + 3], 0)
        self.stamp(9)
        if self.opt.get("stamps"): self("v_writelane_b32 v%d, s%d, 21" % (vST, sLOOP))
        Mm = DD + 8; Ll = DD + 9; Mx = DD + 10; Wt = DD + 11
        self("v_mov_b32 v%d, v%d\nv_mov_b32 v%d, v%d" % (Mm, OD + 2, Ll, OD + 2))
        self("v_permlane16_swap_b32 v%d, v%d" % (Mm, Ll))
        self("v_max_f32_dpp v%d, v%d, v%d row_ror:8 %s" % (Mx, Mm, Mm, DPPALL))
        self.row_allreduce([Mx], "v_max_f32", (4, 2, 1))
        self("v_sub_f32 v%d, v%d, v%d\nv_mul_f32 v%d, 0x%x, v%d\nv_exp_f32 v%d, v%d" % (Wt, Mm, Mx, Wt, C_EXP, Wt, Wt, Wt))
        self("v_mul_f32 v%d, v%d, v%d\nv_mul_f32 v%d, v%d, v%d\nv_mul_f32 v%d, v%d, v%d\nv_mul_f32 v%d, v%d, v%d\nv_mul_f32 v%d, v%d, v%d" % (Ll, Ll, Wt, OD, OD, Wt, OD + 1, OD + 1, Wt, OE, OE, Wt, OE + 1, OE + 1, Wt))
        self.row_allreduce([Ll, OD, OD + 1, OE, OE + 1], "v_add_f32")
        self("v_rcp_f32 v%d, v%d" % (Ll, Ll))
        self("v_mul_f32 v%d, v%d, v%d\nv_mul_f32 v%d, v%d, v%d\nv_mul_f32 v%d, v%d, v%d\nv_mul_f32 v%d, v%d, v%d" % (OD, OD, Ll, OD + 1, OD + 1, Ll, OE, OE, Ll, OE + 1, OE + 1, Ll))
        self("v_cvt_pk_bf16_f32 v%d, v%d, v%d\nv_cvt_pk_bf16_f32 v%d, v%d, v%d" % (OD, OD, OD + 1, OE, OE, OE + 1))
        self.execm(0x0001000100010001)
        self("ds_write_b32 v%d, v%d\nds_write_b32 v%d, v%d offset:64" % (hW, OD, hW, OE))
        self.execm(-1)
        self("s_waitcnt lgkmcnt(0)\ns_barrier")
        self.stamp(12)
        self("s_branch L_FIN")
        self.lab("L_T_WO_B")
        l = self.if_duty_wave()
        if self.opt.get("dlate", 0): self.issue_duty()
        self("v_mov_b32 v%d, s%d\nv_mov_b32 v%d, s%d" % (GR + 1, sTAG, GR + 3, sTAG))
        self("s_waitcnt vmcnt(0)")
        self.stamp(11, 8)
        self.duty_perm(KR)
        self.lab(l)
        self("s_barrier")
        l = self.if_duty_wave()
        self("ds_read_b128 v[%d:%d], v%d\ns_waitcnt lgkmcnt(0)" % (ACC, ACC + 3, hAF))
        self.duty_mfma(ACC, KR, GR)
        self("buffer_store_dwordx4 v[%d:%d], v%d, s[%d:%d], s%d offen sc1" % (GR, GR + 3, hP, srdWS, srdWS + 3, sP3))
        self.stamp(10, 8)
        self.lab(l)
        self("s_branch L_FIN")
    def tail_R(self):
        self.lab("L_T_R")
        VO, aRSW, aRSR = vA, vB, vC
        XV = vF; GS = vG
        self("s_cmp_ge_u32 s%d, 8\ns_cbranch_scc1 L_T_R_B" % sWAVE)
        self("buffer_load_ushort v%d, v%d, s[%d:%d], 0 offen" % (XV, VO, srdX, srdX + 3))
        ldF = "buffer_load_dwordx4 v[%d:%d], v%d, s[%d:%d], s%d offen sc1" % (DD, DD + 3, vL16, srdWS, srdWS + 3, sP1)
        S0 = DD + 8; S1 = DD + 12
        ldS = ["buffer_load_dwordx4 v[%d:%d], v%d, s[%d:%d], s%d offen sc1" % (S0, S0 + 3, vL16, srdWS, srdWS + 3, sP2),
               "buffer_load_dwordx4 v[%d:%d], v%d, s[%d:%d], s%d offen offset:1024 sc1" % (S1, S1 + 3, vL16, srdWS, srdWS + 3, sP2)]
        l = self.if_cmp("lt", sWAVE, 7)
        self(ldF)
        self.masked_poll(ldF, [DD + 1, DD + 3], 0)
        self.cross16([DD, DD + 2], [DD + 4, DD + 5], "v_add_f32"); self.cross32([DD, DD + 2], [DD + 4, DD + 5], "v_add_f32")
        self("v_mov_b32 v%d, v%d" % (DD + 1, DD + 2))
        self.execm(0xFFFF)
        self("ds_write_b64 v%d, v[%d:%d] offset:2048" % (aRSW, DD, DD + 1))
        self.execm(-1)
        self.lab(l)
        self("s_waitcnt lgkmcnt(0)\ns_barrier")
        self(ldS[0]); self(ldS[1])
        l = self.if_cmp("eq", sWAVE, 0)
        self("v_and_b32 v%d, 31, v%d\nv_lshlrev_b32 v%d, 2, v%d\nv_add_u32 v%d, %d, v%d" % (vE, vLANE, vE, vE, vE, RSF, vE))
        F = DD + 16
        for w in range(7): self("ds_read_b32 v%d, v%d offset:%d" % (F + w, vE, w * 128))
        self("s_waitcnt lgkmcnt(0)")
        self("v_add_f32 v%d, v%d, v%d\nv_add_f32 v%d, v%d, v%d\nv_add_f32 v%d, v%d, v%d\nv_add_f32 v%d, v%d, v%d\nv_add_f32 v%d, v%d, v%d\nv_add_f32 v%d, v%d, v%d"
             % (F, F, F + 1, F + 2, F + 2, F + 3, F + 4, F + 4, F + 5, F, F, F + 2, F + 4, F + 4, F + 6, F, F, F + 4))
        self.bf16r(F, F)
        self("v_mul_f32 v%d, 0x%x, v%d\nv_exp_f32 v%d, v%d\nv_add_f32 v%d, 1.0, v%d\nv_rcp_f32 v%d, v%d\nv_mul_f32 v%d, v%d, v%d" % (F + 1, f2u(-LOG2E), F, F + 1, F + 1, F + 1, F + 1, F + 1, F + 1, F, F, F + 1))
        self.bf16r(GS, F)
        self.lab(l)
        self.stamp(9)
        if self.opt.get("rpipe", 1):
            sets = [DD + 8, DD + 16, DD + 24]
            def ld(X):
                self("buffer_load_dwordx4 v[%d:%d], v%d, s[%d:%d], s%d offen sc1" % (X, X + 3, vL16, srdWS, srdWS + 3, sP2))
                self("buffer_load_dwordx4 v[%d:%d], v%d, s[%d:%d], s%d offen offset:1024 sc1" % (X + 4, X + 7, vL16, srdWS, srdWS + 3, sP2))
            lp = self.nl("L_rp"); dn = self.nl("L_rpd")
            T0 = DD + 6
            slp = self.opt.get("rsleep", 6)
            self("s_mov_b32 s%d, %d" % (sLOOP, self.opt.get("maxpoll", 20000)))
            self("s_sleep %d" % slp); ld(sets[1])
            self("s_sleep %d" % slp); ld(sets[2])
            self.lab(lp)
            oks = []
            for k, X in enumerate(sets):
                ok = self.nl("L_rok"); oks.append(ok)
                self("s_waitcnt vmcnt(4)")
                self("v_cmp_ne_u32 vcc, s%d, v%d\nv_cmp_ne_u32 s[%d:%d], s%d, v%d\nv_cmp_ne_u32 s[%d:%d], s%d, v%d\nv_cmp_ne_u32 s[%d:%d], s%d, v%d"
                     % (sTAG, X + 1, sM0, sM0 + 1, sTAG, X + 3, sP0, sP0 + 1, sTAG, X + 5, sP0 + 2, sP0 + 3, sTAG, X + 7))
                self("s_or_b64 vcc, vcc, s[%d:%d]\ns_or_b64 s[%d:%d], s[%d:%d], s[%d:%d]\ns_or_b64 vcc, vcc, s[%d:%d]" % (sM0, sM0 + 1, sP0, sP0 + 1, sP0, sP0 + 1, sP0 + 2, sP0 + 3, sP0, sP0 + 1))
                self("s_cbranch_scc0 %s" % ok)
                ld(X)
            self("s_sub_u32 s%d, s%d, 1\ns_cmp_lg_u32 s%d, 0\ns_cbranch_scc1 %s" % (sLOOP, sLOOP, sLOOP, lp))
            for k, X in enumerate(sets):
                if k: self("s_branch %s" % dn) if False else None
            for k, X in enumerate(sets):
                self.lab(oks[k])
                self("v_add_f32 v%d, v%d, v%d\nv_add_f32 v%d, v%d, v%d" % (T0, X, X + 4, T0 + 1, X + 2, X + 6))
                if k < 2: self("s_branch %s" % dn)
            self.lab(dn)
            self.stamp(10); self.stamp(10, 7); self.stamp(10, 4)
            if self.opt.get("stamps"): self("v_writelane_b32 v%d, s%d, 21" % (vST, sLOOP))
            S0 = T0
            self.cross16([T0, T0 + 1], [DD + 4, DD + 5], "v_add_f32"); self.cross32([T0, T0 + 1], [DD + 4, DD + 5], "v_add_f32")
            self.execm(0xFFFF)
            self("ds_write_b64 v%d, v[%d:%d]" % (aRSW, T0, T0 + 1))
            self.execm(-1)
        else:
            lp = self.nl("L_rp"); dn = self.nl("L_rpd"); ck = self.nl("L_rpc")
            self("s_mov_b32 s%d, %d" % (sLOOP, self.opt.get("maxpoll", 20000)))
            self("s_waitcnt vmcnt(0)\ns_branch %s" % ck)
            self.lab(lp)
            if self.opt.get("vsleep", 1): self("s_sleep %d" % self.opt.get("vsleep", 1))
            self(ldS[0]); self(ldS[1])
            self("s_waitcnt vmcnt(0)")
            self.lab(ck)
            self("v_cmp_ne_u32 vcc, s%d, v%d\nv_cmp_ne_u32 s[%d:%d], s%d, v%d\nv_cmp_ne_u32 s[%d:%d], s%d, v%d\nv_cmp_ne_u32 s[%d:%d], s%d, v%d"
                 % (sTAG, S0 + 1, sM0, sM0 + 1, sTAG, S0 + 3, sP0, sP0 + 1, sTAG, S1 + 1, sP0 + 2, sP0 + 3, sTAG, S1 + 3))
            self("s_or_b64 vcc, vcc, s[%d:%d]\ns_or_b64 s[%d:%d], s[%d:%d], s[%d:%d]\ns_or_b64 vcc, vcc, s[%d:%d]" % (sM0, sM0 + 1, sP0, sP0 + 1, sP0, sP0 + 1, sP0 + 2, sP0 + 3, sP0, sP0 + 1))
            self("s_cbranch_scc0 %s" % dn)
            self("s_mov_b64 exec, vcc")
            self("s_sub_u32 s%d, s%d, 1\ns_cmp_lg_u32 s%d, 0\ns_cbranch_scc1 %s" % (sLOOP, sLOOP, sLOOP, lp))
            self.lab(dn)
            self("s_mov_b64 exec, -1")
            self.stamp(10); self.stamp(10, 7); self.stamp(10, 4)
            if self.opt.get("stamps"): self("v_writelane_b32 v%d, s%d, 21" % (vST, sLOOP))
            self("v_add_f32 v%d, v%d, v%d\nv_add_f32 v%d, v%d, v%d" % (S0, S0, S1, S0 + 2, S0 + 2, S1 + 2))
            self.cross16([S0, S0 + 2], [DD + 4, DD + 5], "v_add_f32"); self.cross32([S0, S0 + 2], [DD + 4, DD + 5], "v_add_f32")
            self("v_mov_b32 v%d, v%d" % (S0 + 1, S0 + 2))
            self.execm(0xFFFF)
            self("ds_write_b64 v%d, v[%d:%d]" % (aRSW, S0, S0 + 1))
            self.execm(-1)
        self("s_waitcnt lgkmcnt(0)\ns_barrier")
        self.stamp(12)
        l = self.if_cmp("eq", sWAVE, 0)
        for w in range(4): self("ds_read_b32 v%d, v%d offset:%d" % (DD + w, aRSR, w * 128))
        self("v_lshlrev_b32 v%d, 16, v%d" % (XV, XV))
        self("s_waitcnt lgkmcnt(0)")
        for st in (2, 1):
            for k in range(st): self("v_add_f32 v%d, v%d, v%d" % (DD + k, DD + k, DD + k + st))
        self.cross32([DD], [DD + 1], "v_add_f32")
        self.bf16r(DD, DD)
        self("v_mul_f32 v%d, v%d, v%d" % (DD, DD, GS))
        self.bf16r(DD, DD)
        self("v_add_f32 v%d, v%d, v%d\nv_cvt_pk_bf16_f32 v%d, v%d, v%d" % (DD, XV, DD, DD, DD, DD))
        self.execm(0xFFFFFFFF)
        self("buffer_store_short v%d, v%d, s[%d:%d], 0 offen" % (DD, VO, srdOUT, srdOUT + 3))
        self.execm(-1)
        l2 = self.if_cmp("eq", sIDX, 0)
        self("v_mov_b32 v%d, s%d\nv_mov_b32 v%d, 0" % (vE, sTAG, vH))
        self.execm(1)
        self("buffer_store_dword v%d, v%d, s[%d:%d], 0 offen sc1" % (vE, vH, srdWS, srdWS + 3))
        self.execm(-1)
        self.lab(l2)
        self.lab(l)
        self("s_branch L_FIN")
        self.lab("L_T_R_B")
        self("s_barrier\ns_barrier")
    def fin(self):
        self.lab("L_FIN")
        if self.opt.get("stamps"):
            for w, row in ((0, 0), (8, 1), (15, 2), (7, 3), (4, 4)):
                l = self.if_cmp("eq", sWAVE, w)
                self.stamp(15, w)
                if w == 0:
                    self("s_memrealtime s[%d:%d]\ns_waitcnt lgkmcnt(0)\nv_writelane_b32 v%d, s%d, 16" % (sM0, sM0 + 1, vST, sM0))
                self("s_lshl_b32 s%d, s2, 8\ns_add_u32 s%d, s%d, %d" % (sA, sA, sA, STAMPA + row * 65536))
                self("v_lshlrev_b32 v%d, 2, v%d" % (vF, vLANE))
                self("buffer_store_dword v%d, v%d, s[%d:%d], s%d offen" % (vST, vF, srdWS, srdWS + 3, sA))
                self.lab(l)
        self.lab("L_exit")
        self("s_endpgm")

def gen(**opt):
    g = G(opt)
    g.prologue()
    g.path_B()
    g.join_pv()
    g.tail_D(); g.tail_WO(); g.tail_R(); g.fin()
    lines = hazard.resolve(g.a.lines)
    return wrap("\n".join(lines) + "\n", (256, 1, 1), (1024, 1, 1), LDS_BYTES, vgpr=128)
if __name__ == "__main__":
    import argparse
    p = argparse.ArgumentParser()
    p.add_argument("-o", default="recurrent_scan__sliding_block_cached__glu_gated_bilinear__decode.s")
    p.add_argument("--stamps", type=int, default=0)
    p.add_argument("--opt", default="")
    x = p.parse_args()
    opt = dict(stamps=x.stamps)
    for kv in x.opt.split(","):
        if kv: k, v = kv.split("="); opt[k] = int(v)
    open(x.o, "w").write(gen(**opt))
    print("written", x.o)

def rolemap(x, d, nA=22, nB=16):
    import numpy as np
    nC = (120 - 4 * nA - 2 * nB) // 2
    k = np.where(d < 8, d, d - 8); wo = (d >= 8) & (d < 16)
    nx = np.array([nA] * 4 + [nC] * 2 + [nB] * 2)[x]
    hoff = np.array([0, nA, 2 * nA, 3 * nA, 4 * nA + 2 * nB, 4 * nA + 2 * nB + nC, 4 * nA, 4 * nA + nB])[x]
    mC, mB, mA = 24 - nC, 24 - nB, 24 - nA
    loff = np.array([2 * mC + 2 * mB + i * mA for i in range(4)] + [0, mC, 2 * mC, 2 * mC + mB])[x]
    heavy = ~wo & (k < nx); light = ~wo & ~heavy
    h = hoff + k; l = loff + k - nx
    return {"Q": heavy & (h < 64), "WO": wo, "GU": heavy & (h >= 64), "D": light & (l < 28), "R": light & (l >= 28) & (l < 56), "N": light & (l >= 56)}
```

```python
import sys, struct
from asmlib import *
import hazard

EPOCH = 0
XT = 1024
QB = 4096; GB = 36864; UB = 51200; FB = 73728; SB = 274432; OB = 1048576
STAMPA = 8 << 20
QS = 131072; PS = 132096; MX = 133120; LS = 133248; GU = 133376; OA = 133888
RS = 134400; RSF = RS + 2048; RED = 138496; FLG = RED + 4096
C_S1 = FLG + 32; C_S2 = FLG + 36; C_SP = FLG + 40; C_LOC = FLG + 44; C_V1 = FLG + 48; RACC = FLG + 128
LDS_BYTES = 163840
LOG2E = 1.4426950408889634
def f2u(x): return struct.unpack("<I", struct.pack("<f", x))[0]
C_EXP = f2u(LOG2E / 16.0)
OFMT16 = True
ROLEMAP = 4

sWAVE = 3
sX, sK, sV, sWQ, sWO, sGATE, sUP = 4, 6, 8, 10, 12, 16, 18
sDOWN, sOUT, sWS = 20, 22, 26
srdS, srdW, srdWS, srdX, srdOUT = 28, 32, 36, 40, 44
sTAG = 48; sHKV = 49; sD = 50; sROLE = 51; sIDX = 52; sKVOFF = 53
sA = 54; sBt = 55; sC = 56; sLOOP = 57; sSTRIDE = 58; sDST = 59; sDOFF = 60; sOPUB = 61; sQPOLL = 62; sLOCAL = 63
sP0 = 64
sSELLO = 96; sSELHI = 97; sM0 = 98; sP1 = 100; sP2 = 101; sP3 = 14; sP4 = 15; sDW = 24; sROT = 95; sVW = 25; sDWt = 94
R_Q, R_GU, R_D, R_WO, R_R, R_N = 0, 1, 2, 3, 4, 5

vLANE = 1; vK = 2; vV0 = 3
aQW = 2; aQA, aMXW, aMXR, aPS = 3, 4, 5, 6
vA = 7; vB = 8; vC = 9; vDo = 10; vE = 11; vF = 12; vG = 13; vH = 14; vI = 15
KR = 16; RAW = 48; DD = 80; ACC = 112; GR = 116; vL16 = 126; vST = 127
aT1, aT2, aOP, aPA, aML, aPS2 = 120, 121, 122, 123, 124, 125
DPPALL = "row_mask:0xf bank_mask:0xf"

class G:
    def __init__(self, opt):
        self.a = Asm(); self.opt = opt
    def __call__(self, s): self.a(s)
    def lab(self, n): self.a.label(n)
    def nl(self, p): return self.a.newlabel(p)
    def stamp(self, k, wave=0):
        if not self.opt.get("stamps"): return
        if self.opt.get("minst") and k not in (1, 6, 7, 15): return
        l = self.nl("L_st")
        self("s_cmp_lg_u32 s%d, %d\ns_cbranch_scc1 %s" % (sWAVE, wave, l))
        self("s_memtime s[%d:%d]\ns_waitcnt lgkmcnt(0)\nv_writelane_b32 v%d, s%d, %d" % (sM0, sM0 + 1, vST, sM0, k))
        self.lab(l)
    def srd(self, d, p, size):
        self("s_mov_b32 s%d, s%d\ns_mov_b32 s%d, s%d\ns_mov_b32 s%d, 0x%x\ns_mov_b32 s%d, 0x20000" % (d, p, d + 1, p + 1, d + 2, size, d + 3))
    def execm(self, mask):
        if mask == -1: self("s_mov_b64 exec, -1")
        elif mask <= 64: self("s_mov_b64 exec, %d" % mask)
        elif mask < (1 << 32): self("s_mov_b32 exec_lo, 0x%x\ns_mov_b32 exec_hi, 0" % mask)
        else: self("s_mov_b32 exec_lo, 0x%x\ns_mov_b32 exec_hi, 0x%x" % (mask & 0xffffffff, mask >> 32))
    def smask(self, s, mask):
        self("s_mov_b32 s%d, 0x%x\ns_mov_b32 s%d, 0x%x" % (s, mask & 0xffffffff, s + 1, mask >> 32))
    def row_allreduce(self, regs, op, steps=(8, 4, 2, 1)):
        for st in steps:
            for r in regs: self("%s_dpp v%d, v%d, v%d row_ror:%d %s" % (op, r, r, r, st, DPPALL))
    def cross16(self, regs, tmps, op):
        for r, t in zip(regs, tmps): self("v_mov_b32 v%d, v%d" % (t, r))
        for r, t in zip(regs, tmps): self("v_permlane16_swap_b32 v%d, v%d" % (r, t))
        for r, t in zip(regs, tmps): self("%s v%d, v%d, v%d" % (op, r, r, t))
    def cross32(self, regs, tmps, op):
        for r, t in zip(regs, tmps): self("v_mov_b32 v%d, v%d" % (t, r))
        for r, t in zip(regs, tmps): self("v_permlane32_swap_b32 v%d, v%d" % (r, t))
        for r, t in zip(regs, tmps): self("%s v%d, v%d, v%d" % (op, r, r, t))
    def bf16r(self, d, s):
        self("v_cvt_pk_bf16_f32 v%d, v%d, v%d\nv_lshlrev_b32 v%d, 16, v%d" % (d, s, s, d, d))
    def prio(self, p):
        if self.opt.get("prio", 1): self("s_setprio %d" % p)
    def if_cmp(self, cond, reg, val):
        inv = {"eq": "lg", "lg": "eq", "lt": "ge", "ge": "lt"}[cond]
        l = self.nl("L_if")
        self("s_cmp_%s_u32 s%d, %d\ns_cbranch_scc1 %s" % (inv, reg, val, l))
        return l
    def arrive(self, cnt):
        self("s_waitcnt lgkmcnt(0)\nv_mov_b32 v%d, %d\nv_mov_b32 v%d, 1" % (vE, cnt, vH))
        self.execm(1)
        self("ds_add_u32 v%d, v%d" % (vE, vH))
        self.execm(-1)
    def swait(self, cnt, target):
        lp = self.nl("L_sw"); dn = self.nl("L_swd")
        self("v_mov_b32 v%d, %d\ns_mov_b32 s%d, 1000000" % (vE, cnt, sLOOP))
        self.lab(lp)
        self("ds_read_b32 v%d, v%d\ns_waitcnt lgkmcnt(0)\nv_cmp_gt_u32 vcc, %d, v%d\ns_cbranch_vccz %s" % (vH, vE, target, vH, dn))
        self("s_sub_u32 s%d, s%d, 1\ns_cmp_lg_u32 s%d, 0\ns_cbranch_scc1 %s" % (sLOOP, sLOOP, sLOOP, lp))
        self.lab(dn)
    def code_prefetch(self, junk):
        self("s_getpc_b64 s[%d:%d]" % (sM0, sM0 + 1))
        pc = self.nl("L_pc")
        self.lab(pc)
        self("s_sub_u32 s%d, s%d, %s-L_kstart\ns_subb_u32 s%d, s%d, 0" % (sM0, sM0, pc, sM0 + 1, sM0 + 1))
        self("s_lshl_b32 s%d, s%d, 10" % (sA, sWAVE))
        self("v_add_u32 v%d, s%d, v%d" % (vE, sA, vL16))
        self("v_min_u32 v%d, L_exit-L_kstart-16, v%d" % (vE, vE))
        self("global_load_dwordx4 v[%d:%d], v%d, s[%d:%d]" % (junk, junk + 3, vE, sM0, sM0 + 1))
    def issue_duty(self):
        self("s_mov_b32 s%d, s%d" % (sA, sDOFF))
        for i in range(8):
            self("buffer_load_dwordx4 v[%d:%d], v%d, s[%d:%d], s%d offen nt" % (RAW + 4 * i, RAW + 4 * i + 3, vDo, srdW, srdW + 3, sA))
            if i < 7: self("s_add_u32 s%d, s%d, s%d" % (sA, sA, sSTRIDE))
    def duty_lane_addr(self):
        self("v_lshrrev_b32 v%d, 3, v%d\nv_and_b32 v%d, 7, v%d\nv_lshlrev_b32 v%d, 4, v%d" % (vE, vLANE, vDo, vLANE, vDo, vDo))
        self("s_lshl_b32 s%d, s%d, 3\nv_mul_u32_u24 v%d, s%d, v%d\nv_add_u32 v%d, v%d, v%d" % (sA, sSTRIDE, vE, sA, vE, vDo, vDo, vE))
    def duty_perm(self, BF):
        self("s_mov_b32 s%d, 0x05040100\ns_mov_b32 s%d, 0x07060302" % (sSELLO, sSELHI))
        for e in range(8):
            sel = sSELHI if e & 1 else sSELLO
            for p in range(4):
                self("v_perm_b32 v%d, v%d, v%d, s%d" % (BF + 4 * e + p, RAW + 4 * (2 * p + 1) + (e >> 1), RAW + 4 * (2 * p) + (e >> 1), sel))
    def duty_mfma(self, AFr, BF, X):
        D = RAW
        for e in range(8):
            self("v_mfma_f32_16x16x32_bf16 v[%d:%d], v[%d:%d], v[%d:%d], 0" % (D + 4 * e, D + 4 * e + 3, AFr, AFr + 3, BF + 4 * e, BF + 4 * e + 3))
        Y0, Y2, Z0, Z2 = X, X + 2, vH, vI
        for gp in range(4):
            rm = 1 << gp
            e0, e1 = 2 * gp, 2 * gp + 1
            self("v_add_f32_dpp v%d, v%d, v%d row_ror:8 row_mask:0x%x bank_mask:0x3" % (Y0, D + 4 * e0 + 1, D + 4 * e0, rm))
            self("v_add_f32_dpp v%d, v%d, v%d row_ror:8 row_mask:0x%x bank_mask:0x3" % (Y2, D + 4 * e1 + 1, D + 4 * e1, rm))
            self("v_add_f32_dpp v%d, v%d, v%d row_ror:8 row_mask:0x%x bank_mask:0xc" % (Z0, D + 4 * e0 + 2, D + 4 * e0 + 3, rm))
            self("v_add_f32_dpp v%d, v%d, v%d row_ror:8 row_mask:0x%x bank_mask:0xc" % (Z2, D + 4 * e1 + 2, D + 4 * e1 + 3, rm))
        self("v_mov_b32_dpp v%d, v%d quad_perm:[0,1,2,3] row_mask:0xf bank_mask:0xc" % (Y0, Z0))
        self("v_mov_b32_dpp v%d, v%d quad_perm:[0,1,2,3] row_mask:0xf bank_mask:0xc" % (Y2, Z2))
    def poll_scalar(self, srcs):
        nbuf = len(srcs)
        lp = self.nl("L_ps"); dn = self.nl("L_pd")
        self("s_mov_b32 s%d, %d" % (sLOOP, self.opt.get("maxpoll", 20000)))
        self.lab(lp)
        for k, (so, im) in enumerate(srcs):
            self("s_load_dwordx16 s[%d:%d], s[%d:%d], s%d offset:%d glc" % (sP0 + 16 * k, sP0 + 16 * k + 15, sWS, sWS + 1, so, im))
        self("s_waitcnt lgkmcnt(0)")
        tags = [sP0 + 1 + 2 * i for i in range(8 * nbuf)]
        self("s_and_b32 s%d, s%d, s%d\ns_or_b32 s%d, s%d, s%d" % (sBt, tags[0], tags[1], sC, tags[0], tags[1]))
        for t in tags[2:]:
            self("s_and_b32 s%d, s%d, s%d\ns_or_b32 s%d, s%d, s%d" % (sBt, sBt, t, sC, sC, t))
        self("s_xor_b32 s%d, s%d, s%d\ns_xor_b32 s%d, s%d, s%d\ns_or_b32 s%d, s%d, s%d" % (sBt, sBt, sTAG, sC, sC, sTAG, sBt, sBt, sC))
        self("s_cbranch_scc0 %s" % dn)
        self("s_sleep %d" % self.opt.get("sleep", 2))
        self("s_sub_u32 s%d, s%d, 1\ns_cmp_lg_u32 s%d, 0\ns_cbranch_scc1 %s" % (sLOOP, sLOOP, sLOOP, lp))
        self.lab(dn)
    def scalars_to_lds(self, n, vaddr):
        for i in range(n):
            self("v_writelane_b32 v%d, s%d, %d" % (vE, sP0 + 2 * i, i))
        self.execm((1 << n) - 1)
        self("ds_write_b32 v%d, v%d" % (vaddr, vE))
        self.execm(-1)
    def masked_poll(self, load, tagregs, first_wait, slp=None, adaptive=None):
        if isinstance(load, list): load = "\n".join(load)
        if slp is None: slp = self.opt.get("vsleep", 1)
        lp = self.nl("L_mp"); dn = self.nl("L_mpd"); ck = self.nl("L_mpc")
        self("s_mov_b32 s%d, %d" % (sLOOP, self.opt.get("maxpoll", 20000)))
        self("s_waitcnt vmcnt(%d)\ns_branch %s" % (first_wait, ck))
        self.lab(lp)
        if adaptive:
            l = self.nl("L_ad")
            self("s_bcnt1_i32_b64 s%d, exec\ns_cmp_le_u32 s%d, %d\ns_cbranch_scc1 %s\ns_sleep %d" % (sC, sC, adaptive[0], l, adaptive[1]))
            self.lab(l)
        if slp: self("s_sleep %d" % slp)
        self(load)
        self("s_waitcnt vmcnt(0)")
        self.lab(ck)
        self("v_cmp_ne_u32 vcc, s%d, v%d" % (sTAG, tagregs[0]))
        if len(tagregs) > 1:
            self("v_cmp_ne_u32 s[%d:%d], s%d, v%d" % (sM0, sM0 + 1, sTAG, tagregs[1]))
            self("s_or_b64 vcc, vcc, s[%d:%d]" % (sM0, sM0 + 1))
            self("s_cbranch_scc0 %s" % dn)
        else:
            self("s_cbranch_vccz %s" % dn)
        self("s_mov_b64 exec, vcc")
        self("s_sub_u32 s%d, s%d, 1\ns_cmp_lg_u32 s%d, 0\ns_cbranch_scc1 %s" % (sLOOP, sLOOP, sLOOP, lp))
        self.lab(dn)
        self("s_mov_b64 exec, -1")
    def tag_ready(self):
        self("s_waitcnt lgkmcnt(0)\ns_add_u32 s%d, s%d, 1" % (sTAG, sTAG))

    def common_prep(self):
        L = vLANE; t0, t1, t2 = vE, vH, vI
        self("v_lshrrev_b32 v%d, 4, v%d\nv_and_b32 v%d, 1, v%d" % (t2, L, t1, L))
        self("v_lshlrev_b32 v%d, 9, v%d\nv_lshl_add_u32 v%d, v%d, 4, v%d\nv_add_u32 v%d, %d, v%d" % (t1, t1, t1, t2, t1, aPA, PS, t1))
        self("v_and_b32 v%d, 15, v%d\nv_lshlrev_b32 v%d, 3, v%d\nv_lshl_add_u32 v%d, v%d, 16, v%d" % (t0, L, t1, t0, aOP, t2, t1))
        self("v_and_b32 v%d, 7, v%d\nv_lshlrev_b32 v%d, 3, v%d\nv_and_b32 v%d, 1, v%d\nv_lshl_add_u32 v%d, v%d, 2, v%d\nv_add_u32 v%d, %d, v%d" % (t0, L, t0, t0, t2, t2, t0, t2, t0, aML, MX, t0))
        self("v_lshrrev_b32 v%d, 2, v%d\nv_and_b32 v%d, 7, v%d\nv_xor_b32 v%d, s%d, v%d\nv_lshlrev_b32 v%d, 5, v%d" % (t0, L, t2, t0, t2, sWAVE, t2, t2, t2))
        self("v_and_b32 v%d, 8, v%d\nv_cmp_eq_u32 vcc, 0, v%d" % (t1, t1, t1) if False else "v_lshl_add_u32 v%d, v%d, 9, v%d\nv_and_b32 v%d, 3, v%d" % (t0, t0, t2, t1, L))
        self("v_lshl_add_u32 v%d, v%d, 3, v%d\nv_add_u32 v%d, 0x10000, v%d" % (aT1, t1, t0, aT2, aT1))
        self("s_lshl_b32 s%d, s%d, 3\ns_lshr_b32 s%d, s%d, 2\ns_add_u32 s%d, s%d, s%d\ns_lshl_b32 s%d, s%d, 14" % (sA, sHKV, sBt, sWAVE, sA, sA, sBt, sA, sA))
        self("s_and_b32 s%d, s%d, 1\ns_lshl_b32 s%d, s%d, 13\ns_add_u32 s%d, s%d, s%d\ns_lshr_b32 s%d, s%d, 1\ns_lshl_b32 s%d, s%d, 9\ns_add_u32 s%d, s%d, s%d" % (sBt, sD, sBt, sBt, sA, sA, sBt, sBt, sD, sBt, sBt, sA, sA, sBt))
        self("s_and_b32 s%d, s%d, 3\ns_lshl_b32 s%d, s%d, 7\ns_add_u32 s%d, s%d, s%d\ns_add_u32 s%d, s%d, %d" % (sBt, sWAVE, sBt, sBt, sA, sA, sBt, sOPUB, sA, OB))
    def role_prep(self):
        lj = self.nl("L_rp")
        l = self.if_cmp("eq", sROLE, R_D)
        self.srd(srdW, sDOWN, 1792 * 448 * 2)
        self.rowblock_setup()
        self.afrag_off(vA, GU, 7)
        self.pub_addr(vB, FB, 28 * 256, sP2)
        self("s_branch %s" % lj)
        self.lab(l)
        l = self.if_cmp("eq", sROLE, R_WO)
        self.srd(srdW, sWO, 4096 * 448 * 2)
        self.rowblock_setup()
        hO, hW, hAF, hP = vA, vC, vF, vG
        self.afrag_off(hAF, OA, 7)
        self.pub_addr(hP, SB, 64 * 256, sP3)
        self("v_and_b32 v%d, 15, v%d\nv_lshrrev_b32 v%d, 4, v%d\nv_lshlrev_b32 v%d, 4, v%d\nv_lshl_add_u32 v%d, v%d, 9, v%d"
             % (vH, vLANE, vI, vLANE, vE, vI, hO, vH, vE))
        self("s_and_b32 s%d, s%d, 1\ns_lshr_b32 s%d, s%d, 1" % (sC, sWAVE, sDST, sWAVE))
        self("s_lshl_b32 s%d, s%d, 14\ns_lshl_b32 s%d, s%d, 13\ns_add_u32 s%d, s%d, s%d\ns_lshl_b32 s%d, s%d, 6\ns_add_u32 s%d, s%d, s%d\ns_add_u32 s%d, s%d, %d"
             % (sP1, sIDX, sA, sC, sP1, sP1, sA, sA, sDST, sP1, sP1, sA, sP1, sP1, OB))
        self("s_lshl_b32 s%d, s%d, 7\ns_lshl_b32 s%d, s%d, 4\ns_add_u32 s%d, s%d, s%d\ns_add_u32 s%d, s%d, %d\nv_lshl_add_u32 v%d, v%d, 2, s%d"
             % (sA, sC, sBt, sDST, sA, sA, sBt, sA, sA, OA, hW, vI, sA))
        self("s_branch %s" % lj)
        self.lab(l)
        l = self.if_cmp("eq", sROLE, R_R)
        self.srd(srdX, sX, 1792); self.srd(srdOUT, sOUT, 1792)
        VO, aRSW, aRSR = vA, vB, vC
        self("v_bfe_u32 v%d, v%d, 4, 1\nv_mul_u32_u24 v%d, 896, v%d\nv_and_b32 v%d, 15, v%d\nv_lshl_add_u32 v%d, v%d, 1, v%d\ns_lshl_b32 s%d, s%d, 5\nv_add_u32 v%d, s%d, v%d"
             % (VO, vLANE, VO, VO, vE, vLANE, VO, vE, VO, sA, sIDX, VO, sA, VO))
        self("s_lshl_b32 s%d, s%d, 7\ns_add_u32 s%d, s%d, %d\nv_lshl_add_u32 v%d, v%d, 3, s%d" % (sA, sWAVE, sA, sA, RS, aRSW, vLANE, sA))
        self("v_and_b32 v%d, 31, v%d\nv_lshlrev_b32 v%d, 2, v%d\nv_lshrrev_b32 v%d, 5, v%d\nv_lshl_add_u32 v%d, v%d, 9, v%d\nv_add_u32 v%d, %d, v%d" % (vE, vLANE, vE, vE, vH, vLANE, aRSR, vH, vE, aRSR, RS, aRSR))
        if self.opt.get("radd", 0) and self.opt.get("rpipe", 1):
            self("v_and_b32 v%d, 15, v%d\nv_lshlrev_b32 v%d, 3, v%d\nv_add_u32 v%d, %d, v%d" % (vE, vLANE, vE, vE, vDo, RACC, vE))
            self("v_and_b32 v%d, 31, v%d\nv_lshlrev_b32 v%d, 2, v%d\nv_add_u32 v%d, %d, v%d" % (vE, vLANE, vE, vE, aRSR, RACC, vE))
        self("s_mul_i32 s%d, s%d, %d\ns_lshl_b32 s%d, s%d, 10\ns_add_u32 s%d, s%d, s%d\ns_add_u32 s%d, s%d, %d" % (sP1, sIDX, 28 * 256, sA, sWAVE, sP1, sP1, sA, sP1, sP1, FB))
        self("s_lshl_b32 s%d, s%d, 14\ns_lshl_b32 s%d, s%d, 11\ns_add_u32 s%d, s%d, s%d\ns_add_u32 s%d, s%d, %d" % (sP2, sIDX, sA, sWAVE, sP2, sP2, sA, sP2, sP2, SB))
        self.lab(l)
        self.lab(lj)
    def rowblock_setup(self):
        self("s_sub_u32 s%d, s%d, 8" % (sDW, sWAVE))
        self("s_mov_b32 s%d, 896\ns_mul_i32 s%d, s%d, 57344\ns_lshl_b32 s%d, s%d, 7\ns_add_u32 s%d, s%d, s%d" % (sSTRIDE, sDOFF, sIDX, sA, sDW, sDOFF, sDOFF, sA))
        self.duty_lane_addr()
    def afrag_off(self, v, base, bstride_shift):
        self("v_bfe_u32 v%d, v%d, 1, 1\nv_lshlrev_b32 v%d, %d, v%d\nv_lshrrev_b32 v%d, 4, v%d\nv_lshl_add_u32 v%d, v%d, 5, v%d" % (v, vLANE, v, bstride_shift, v, vE, vLANE, v, vE, v))
        self("v_and_b32 v%d, 1, v%d\nv_lshl_add_u32 v%d, v%d, 4, v%d\nv_add_u32 v%d, %d, v%d" % (vE, vLANE, v, vE, v, v, base, v))
    def pub_addr(self, v, base, strideR, sdst):
        self("v_bfe_u32 v%d, v%d, 1, 2\nv_mul_u32_u24 v%d, %d, v%d" % (v, vLANE, v, strideR, v))
        self("v_bfe_u32 v%d, v%d, 3, 1\nv_lshl_add_u32 v%d, v%d, 7, v%d" % (vE, vLANE, v, vE, v))
        self("v_and_b32 v%d, 1, v%d\nv_lshl_add_u32 v%d, v%d, 6, v%d" % (vE, vLANE, v, vE, v))
        self("v_lshrrev_b32 v%d, 4, v%d\nv_lshl_add_u32 v%d, v%d, 4, v%d" % (vE, vLANE, v, vE, v))
        self("s_mul_i32 s%d, s%d, %d\ns_lshl_b32 s%d, s%d, 8\ns_add_u32 s%d, s%d, s%d\ns_add_u32 s%d, s%d, %d" % (sA, sDW, 4 * strideR, sdst, sIDX, sdst, sdst, sA, sdst, sdst, base))
    def if_duty_wave(self):
        l = self.nl("L_dw")
        self("s_sub_u32 s%d, s%d, 8\ns_cmp_ge_u32 s%d, 7\ns_cbranch_scc1 %s" % (sA, sWAVE, sA, l))
        return l

    def prologue(self):
        self.lab("L_kstart")
        if self.opt.get("stamps"): self("s_memtime s[92:93]")
        self("s_load_dwordx16 s[4:19], s[0:1], 0\ns_load_dwordx8 s[20:27], s[0:1], 64")
        self("v_lshrrev_b32 v%d, 6, v0\nv_and_b32 v%d, 63, v0" % (vA, vLANE))
        self("s_cmpk_ge_u32 s2, 0x100\ns_cbranch_scc1 L_exit")
        self("v_readfirstlane_b32 s%d, v%d" % (sWAVE, vA))
        self("s_and_b32 s%d, s2, 15\ns_lshl_b32 s%d, s%d, 24\ns_lshr_b32 s%d, s2, 4\ns_lshl_b32 s%d, s%d, 17\ns_or_b32 s%d, s%d, s%d" % (sA, sA, sA, sC, sBt, sC, sA, sA, sBt))
        self.prio(3)
        self("s_and_b32 s%d, s%d, 7\ns_lshl_b32 s%d, s%d, 14\ns_or_b32 s%d, s%d, s%d\ns_or_b32 s%d, s%d, 0xe00000" % (sBt, sWAVE, sBt, sBt, sA, sA, sBt, sKVOFF, sA))
        rot = self.opt.get("rot", 11)
        if "ra" in self.opt:
            ra, rb, rc = self.opt.get("ra", 1), self.opt.get("rb", 2), self.opt.get("rc", 0)
            self("s_mul_i32 s%d, s%d, %d\ns_mul_i32 s%d, s%d, %d\ns_add_u32 s%d, s%d, s%d" % (sROT, sWAVE, rb, sA, sC, ra, sROT, sROT, sA))
            if rc: self("s_and_b32 s%d, s2, 7\ns_mul_i32 s%d, s%d, %d\ns_add_u32 s%d, s%d, s%d" % (sA, sA, sA, rc, sROT, sROT, sA))
            self("s_and_b32 s%d, s%d, 15" % (sROT, sROT))
        elif rot == 11: self("s_lshl_b32 s%d, s%d, 1\ns_add_u32 s%d, s%d, s%d\ns_and_b32 s%d, s%d, 15" % (sROT, sWAVE, sROT, sROT, sC, sROT, sROT))
        elif rot == 5: self("s_and_b32 s%d, s%d, 15" % (sROT, sC))
        elif rot == 4: self("s_add_u32 s%d, s%d, s%d\ns_and_b32 s%d, s%d, 15" % (sROT, sWAVE, sC, sROT, sROT))
        else: self("s_mov_b32 s%d, 0" % sROT)
        if self.opt.get("map", 1) == 1:
            self("s_sub_u32 s%d, s2, 128\ns_cmpk_lt_u32 s%d, 56\ns_cselect_b32 s%d, 0, 2\ns_cmpk_lt_u32 s2, 64\ns_cselect_b32 s%d, 0, s%d" % (sA, sA, sROLE, sROLE, sROLE))
        else:
            nA, nB, nC = self.hv()
            lim = lambda n: 8 * n if n <= 8 else 8 * (n + 8)
            self("s_and_b32 s%d, s2, 7\ns_movk_i32 s%d, %d\ns_cmpk_ge_u32 s%d, 6\ns_cselect_b32 s%d, %d, s%d\ns_cmpk_lt_u32 s%d, 4\ns_cselect_b32 s%d, %d, s%d" % (sBt, sA, lim(nC), sBt, sA, lim(nB), sA, sBt, sA, lim(nA), sA))
            self("s_cmp_lt_u32 s2, s%d\ns_cselect_b32 s%d, 0, 2\ns_sub_u32 s%d, s2, 64\ns_cmpk_lt_u32 s%d, 64\ns_cselect_b32 s%d, 2, s%d" % (sA, sROLE, sA, sA, sROLE, sROLE))
        self("s_cmpk_lt_u32 s%d, 8\ns_cbranch_scc1 L_A" % sWAVE)
    def late_scalars(self):
        self("s_and_b32 s%d, s2, 7\ns_lshr_b32 s%d, s2, 3" % (sHKV, sD))
        self("v_lshlrev_b32 v%d, 4, v%d" % (vL16, vLANE))
    def lds_init(self):
        l = self.if_cmp("eq", sWAVE, 0)
        self("v_mov_b32 v%d, 0\nv_lshlrev_b32 v%d, 2, v%d\nv_add_u32 v%d, %d, v%d\nds_write_b32 v%d, v%d\ns_waitcnt lgkmcnt(0)" % (vB, vA, vLANE, vA, FLG, vA, vA, vB))
        self.lab(l)
    def hv(self):
        nA = self.opt.get("nA", 22); nB = self.opt.get("nB", 16); nC = (120 - 4 * nA - 2 * nB) // 2
        assert 4 * nA + 2 * nB + 2 * nC == 120 and 0 <= nC <= 24
        return nA, nB, nC
    def role_decode(self):
        e = self.nl("L_rd")
        if self.opt.get("map", 1) == 1:
            self("s_mov_b32 s%d, %d\ns_lshl_b32 s%d, s%d, 3\ns_add_u32 s%d, s%d, s%d\ns_cmp_lt_u32 s%d, 8\ns_cbranch_scc1 %s" % (sROLE, R_Q, sIDX, sHKV, sIDX, sIDX, sD, sD, e))
            self("s_mov_b32 s%d, %d\ns_sub_u32 s%d, s%d, 8\ns_cmp_lt_u32 s%d, 16\ns_cbranch_scc1 %s" % (sROLE, R_WO, sIDX, sIDX, sD, e))
            self("s_sub_u32 s%d, s%d, 16\ns_lshl_b32 s%d, s%d, 3\ns_add_u32 s%d, s%d, s%d" % (sIDX, sD, sIDX, sIDX, sIDX, sIDX, sHKV))
            self("s_mov_b32 s%d, %d\ns_cmp_lt_u32 s%d, 56\ns_cbranch_scc1 %s" % (sROLE, R_GU, sIDX, e))
            self("s_mov_b32 s%d, %d\ns_sub_u32 s%d, s%d, 56\ns_cmp_lt_u32 s%d, 28\ns_cbranch_scc1 %s" % (sROLE, R_D, sIDX, sIDX, sIDX, e))
            self("s_mov_b32 s%d, %d\ns_sub_u32 s%d, s%d, 28\ns_cmp_lt_u32 s%d, 28\ns_cbranch_scc1 %s" % (sROLE, R_R, sIDX, sIDX, sIDX, e))
            self("s_mov_b32 s%d, %d" % (sROLE, R_N))
            self.lab(e)
            return
        lh = self.nl("L_rdh"); ll = self.nl("L_rdl")
        nA, nB, nC = self.hv()
        self("s_mov_b32 s%d, %d\ns_lshl_b32 s%d, s%d, 3\ns_add_u32 s%d, s%d, s%d\ns_sub_u32 s%d, s%d, 8\ns_sub_u32 s%d, s%d, 8\ns_cmp_lt_u32 s%d, 8\ns_cbranch_scc1 %s"
             % (sROLE, R_WO, sIDX, sHKV, sIDX, sIDX, sD, sIDX, sIDX, sA, sD, sA, e))
        self("s_sub_u32 s%d, s%d, 8\ns_cmp_lt_u32 s%d, 8\ns_cselect_b32 s%d, s%d, s%d" % (sA, sD, sD, sA, sD, sA))
        hoff = [0, nA, 2 * nA, 3 * nA, 4 * nA + 2 * nB, 4 * nA + 2 * nB + nC, 4 * nA, 4 * nA + nB]
        mC, mB, mA = 24 - nC, 24 - nB, 24 - nA
        loff = [2 * mC + 2 * mB + i * mA for i in range(4)] + [0, mC, 2 * mC, 2 * mC + mB]
        nx = [nA] * 4 + [nC] * 2 + [nB] * 2
        def pk(t): return sum(v << (8 * i) for i, v in enumerate(t))
        for reg, tab in ((sBt, nx), (sIDX, hoff), (sC, loff)):
            v = pk(tab)
            self("s_mov_b32 s%d, 0x%x\ns_mov_b32 s%d, 0x%x\ns_lshl_b32 s%d, s%d, 3\ns_lshr_b64 s[%d:%d], s[%d:%d], s%d\ns_and_b32 s%d, s%d, 0xff"
                 % (sM0, v & 0xffffffff, sM0 + 1, v >> 32, sLOOP, sHKV, sM0, sM0 + 1, sM0, sM0 + 1, sLOOP, reg, sM0))
        self("s_cmp_lt_u32 s%d, s%d\ns_cbranch_scc0 %s_l" % (sA, sBt, ll))
        self("s_add_u32 s%d, s%d, s%d\ns_branch %s" % (sIDX, sIDX, sA, lh))
        self.lab(ll + "_l")
        self("s_sub_u32 s%d, s%d, s%d\ns_add_u32 s%d, s%d, s%d\ns_branch %s" % (sA, sA, sBt, sIDX, sC, sA, ll))
        self.lab(lh)
        self("s_mov_b32 s%d, %d\ns_cmp_lt_u32 s%d, 64\ns_cbranch_scc1 %s" % (sROLE, R_Q, sIDX, e))
        self("s_mov_b32 s%d, %d\ns_sub_u32 s%d, s%d, 64\ns_branch %s" % (sROLE, R_GU, sIDX, sIDX, e))
        self.lab(ll)
        self("s_mov_b32 s%d, %d\ns_cmp_lt_u32 s%d, 28\ns_cbranch_scc1 %s" % (sROLE, R_D, sIDX, e))
        self("s_mov_b32 s%d, %d\ns_sub_u32 s%d, s%d, 28\ns_cmp_lt_u32 s%d, 28\ns_cbranch_scc1 %s" % (sROLE, R_R, sIDX, sIDX, sIDX, e))
        self("s_mov_b32 s%d, %d" % (sROLE, R_N))
        self.lab(e)
    def after_karg(self):
        self("s_mov_b32 s%d, 0x10000000\ns_mov_b32 s%d, 0x20000" % (srdS + 2, srdS + 3))
        if self.opt.get("stamps"): self("s_memtime s[90:91]\nv_mov_b32 v%d, 0" % vST)
        self("s_waitcnt lgkmcnt(0)")
        if self.opt.get("stamps"): self("s_memtime s[88:89]")
    def epoch_load(self):
        self("s_load_dword s%d, s[%d:%d], 0\ns_mov_b32 s%d, 0" % (sTAG, sWS, sWS + 1, sVW))
    def stamp1(self):
        if self.opt.get("stamps"):
            l = self.if_cmp("eq", sWAVE, 0)
            self("s_memrealtime s[%d:%d]\ns_waitcnt lgkmcnt(0)\nv_writelane_b32 v%d, s%d, 0" % (sM0, sM0 + 1, vST, sM0))
            self.lab(l)
            self.stamp(1)
            self("v_writelane_b32 v%d, s92, 22\nv_writelane_b32 v%d, s90, 23\nv_writelane_b32 v%d, s88, 24\nv_writelane_b32 v%d, s88, 25" % (vST, vST, vST, vST))
    def path_A(self):
        self.lab("L_A")
        self("v_mul_u32_u24 v%d, 0x208, v%d\nv_and_b32 v%d, 0xe40, v%d\nv_and_or_b32 v%d, v%d, 48, v%d" % (vK, vLANE, vK, vK, vK, vLANE, vK))
        self("s_lshr_b32 s%d, s%d, 2\ns_lshl_b32 s%d, s%d, 12\ns_and_b32 s%d, s%d, 3\ns_lshl_b32 s%d, s%d, 7\ns_or_b32 s%d, s%d, s%d\ns_xor_b32 s%d, s%d, s%d"
             % (sA, sROT, sA, sA, sBt, sROT, sBt, sBt, sA, sA, sBt, sC, sKVOFF, sA))
        self.after_karg()
        self("s_mov_b32 s%d, s%d\ns_mov_b32 s%d, s%d" % (srdS, sK, srdS + 1, sK + 1))
        l = self.if_cmp("lt", sROLE, R_D)
        self.lds_init()
        self("s_barrier")
        self.prio(2)
        self.lab(l)
        nb = self.opt.get("nbar", 5)
        for i in range(16):
            self("s_xor_b32 s%d, s%d, %d" % (sA, sC, ((i >> 2) << 12) | ((i & 3) << 7)))
            self("buffer_load_dwordx4 v[%d:%d], v%d, s[%d:%d], s%d offen nt" % (KR + 4 * i, KR + 4 * i + 3, vK, srdS, srdS + 3, sA))
            if i == nb - 1:
                l = self.if_cmp("ge", sROLE, R_D)
                self.lds_init()
                self("s_barrier")
                self.lab(l)
        self.epoch_load()
        self.stamp1()
        self.late_scalars()
        self.stamp(2); self.stamp(2, 7); self.stamp(2, 4)
        self.srd(srdWS, sWS, 0x40000000)
        self.code_prefetch(88)
        self.prio(self.opt.get("aprio", 3))
        self.role_decode()
        self.common_prep()
        self.role_prep()
        L = vLANE; t0, t1, t2 = vE, vH, vI
        self("s_lshl_b32 s%d, s%d, 3\ns_add_u32 s%d, s%d, s%d\ns_lshl_b32 s%d, s%d, 9" % (sA, sHKV, sA, sA, sWAVE, sA, sA))
        self("s_and_b32 s%d, s%d, 1\ns_lshl_b32 s%d, s%d, 8\ns_add_u32 s%d, s%d, s%d\ns_add_u32 s%d, s%d, %d" % (sBt, sD, sBt, sBt, sA, sA, sBt, sQPOLL, sA, QB))
        self("s_lshl_b32 s%d, s%d, 7\ns_add_u32 s%d, s%d, %d\nv_lshl_add_u32 v%d, v%d, 2, s%d" % (sA, sWAVE, sA, sA, QS, aQW, L, sA))
        self("v_bfe_u32 v%d, v%d, 1, 1\nv_lshlrev_b32 v%d, 9, v%d\nv_and_b32 v%d, 1, v%d\nv_lshl_add_u32 v%d, v%d, 6, v%d" % (t0, L, t0, t0, t1, L, t0, t1, t0))
        self("v_lshrrev_b32 v%d, 4, v%d\nv_lshl_add_u32 v%d, v%d, 4, v%d\nv_add_u32 v%d, %d, v%d" % (t2, L, t0, t2, t0, aQA, QS, t0))
        self("s_lshl_b32 s%d, s%d, 3\ns_add_u32 s%d, s%d, %d\nv_mov_b32 v%d, s%d" % (sA, sWAVE, sA, sA, MX, aMXW, sA))
        self("v_and_b32 v%d, 7, v%d\nv_lshlrev_b32 v%d, 3, v%d\nv_add_u32 v%d, %d, v%d" % (t0, L, t0, t0, aMXR, MX, t0))
        self("s_lshl_b32 s%d, s%d, 6\ns_add_u32 s%d, s%d, %d" % (sA, sWAVE, sA, sA, PS))
        self("v_and_b32 v%d, 15, v%d\nv_lshrrev_b32 v%d, 2, v%d\nv_lshlrev_b32 v%d, 4, v%d\nv_and_b32 v%d, 3, v%d\nv_lshl_add_u32 v%d, v%d, 1, v%d\nv_add_u32 v%d, s%d, v%d" % (t0, L, t0, t0, t0, t0, t1, L, t0, t1, t0, aPS, sA, t0))
        self("s_bfe_u32 s%d, s%d, 0x10002\ns_lshl_b32 s%d, s%d, 5\ns_bfe_u32 s%d, s%d, 0x10003\ns_lshl_b32 s%d, s%d, 3\ns_or_b32 s%d, s%d, s%d" % (sA, sROT, sA, sA, sBt, sROT, sBt, sBt, sA, sA, sBt))
        self("v_xor_b32 v%d, s%d, v%d\nv_xor_b32 v%d, 8, v%d" % (aPS, sA, aPS, aPS2, aPS))
        self("s_and_b32 s%d, s%d, 3\ns_lshl_b32 s%d, s%d, 7\nv_xor_b32 v%d, s%d, v%d" % (sA, sROT, sA, sA, aQA, sA, aQA))
        self.tag_ready()
        l = self.if_cmp("eq", sWAVE, 7)
        self("s_getreg_b32 s%d, hwreg(HW_REG_XCC_ID, 0, 4)" % sLOCAL)
        l2 = self.if_cmp("eq", sROLE, R_WO)
        self("s_lshl_b32 s%d, s%d, 3\ns_add_u32 s%d, s%d, %d\nv_mov_b32 v%d, s%d\nv_mov_b32 v%d, s%d\nv_mov_b32 v%d, 0" % (sA, sIDX, sA, sA, XT, GR, sLOCAL, GR + 1, sTAG, vE))
        self.execm(1)
        self("buffer_store_dwordx2 v[%d:%d], v%d, s[%d:%d], s%d offen sc1" % (GR, GR + 1, vE, srdWS, srdWS + 3, sA))
        self.execm(-1)
        self.lab(l2)
        self.lab(l)
        if self.opt.get("kfirst", 1): self("s_waitcnt vmcnt(0)")
        self.stamp(14, 0); self.stamp(14, 7); self.stamp(14, 4)
        self.poll_scalar([(sQPOLL, 0), (sQPOLL, 64)])
        self.scalars_to_lds(16, aQW)
        self("v_add_u32 v%d, 64, v%d" % (aQW, aQW))
        self.poll_scalar([(sQPOLL, 128), (sQPOLL, 192)])
        self.stamp(3)
        self.scalars_to_lds(16, aQW)
        self.arrive(C_S1)
        self.swait(C_S1, 8)
        QA = DD + 16
        self("ds_read_b128 v[%d:%d], v%d" % (QA, QA + 3, aQA))
        for t in range(1, 4):
            self("v_xor_b32 v%d, %d, v%d\nds_read_b128 v[%d:%d], v%d" % (vH, t * 128, aQA, QA + 4 * t, QA + 4 * t + 3, vH))
        self("s_waitcnt vmcnt(0) lgkmcnt(0)")
        self.stamp(4)
        for t in range(4):
            for c in range(4):
                D = DD + 4 * c
                self("v_mfma_f32_16x16x32_bf16 v[%d:%d], v[%d:%d], v[%d:%d], %s" % (D, D + 3, QA + 4 * t, QA + 4 * t + 3, KR + 16 * c + 4 * t, KR + 16 * c + 4 * t + 3, "0" if t == 0 else "v[%d:%d]" % (D, D + 3)))
        F = ACC
        for o2 in range(2):
            for h in range(2):
                self("v_add_f32_dpp v%d, v%d, v%d row_ror:8 row_mask:0xf bank_mask:0x3" % (F + 2 * o2 + h, DD + 8 * o2 + 2 * h + 1, DD + 8 * o2 + 2 * h))
        for o2 in range(2):
            for h in range(2):
                self("v_add_f32_dpp v%d, v%d, v%d row_ror:8 row_mask:0xf bank_mask:0xc" % (F + 2 * o2 + h, DD + 8 * o2 + 4 + 2 * h, DD + 8 * o2 + 4 + 2 * h + 1))
        self("v_cvt_pk_bf16_f32 v%d, v%d, v%d\nv_cvt_pk_bf16_f32 v%d, v%d, v%d" % (QA, F, F + 1, QA + 1, F + 2, F + 3))
        self("v_lshlrev_b32 v%d, 16, v%d\nv_and_b32 v%d, 0xffff0000, v%d\nv_lshlrev_b32 v%d, 16, v%d\nv_and_b32 v%d, 0xffff0000, v%d" % (F, QA, F + 1, QA, F + 2, QA + 1, F + 3, QA + 1))
        M0, M1 = GR, GR + 1
        self("v_max_f32 v%d, v%d, v%d\nv_max_f32 v%d, v%d, v%d" % (M0, F, F + 2, M1, F + 1, F + 3))
        self.row_allreduce([M0, M1], "v_max_f32")
        self.execm(1)
        self("ds_write_b64 v%d, v[%d:%d]" % (aMXW, M0, M1))
        self.execm(-1)
        self.arrive(C_S2)
        self.swait(C_S2, 8)
        self("ds_read_b64 v[%d:%d], v%d\ns_waitcnt lgkmcnt(0)" % (M0, M1, aMXR))
        self.row_allreduce([M0, M1], "v_max_f32", (4, 2, 1))
        P = QA + 4
        for k in range(4): self("v_sub_f32 v%d, v%d, v%d" % (P + k, F + k, M0 + (k & 1)))
        for k in range(4): self("v_mul_f32 v%d, 0x%x, v%d" % (P + k, C_EXP, P + k))
        for k in range(4): self("v_exp_f32 v%d, v%d" % (P + k, P + k))
        self("v_cvt_pk_bf16_f32 v%d, v%d, v%d\nv_cvt_pk_bf16_f32 v%d, v%d, v%d" % (QA, P, P + 1, QA + 1, P + 2, P + 3))
        S0, S1 = QA + 8, QA + 9
        self("v_add_f32 v%d, v%d, v%d\nv_add_f32 v%d, v%d, v%d" % (S0, P, P + 2, S1, P + 1, P + 3))
        self.execm(0xFFFF)
        self("ds_write_b16 v%d, v%d\nds_write_b16_d16_hi v%d, v%d offset:512\nds_write_b16 v%d, v%d\nds_write_b16_d16_hi v%d, v%d offset:512" % (aPS, QA, aPS, QA, aPS2, QA + 1, aPS2, QA + 1))
        self.execm(-1)
        self.row_allreduce([S0, S1], "v_add_f32")
        self.execm(1)
        self("ds_write_b64 v%d, v[%d:%d] offset:%d" % (aMXW, S0, S1, LS - MX))
        self.execm(-1)
        l = self.if_cmp("eq", sROLE, R_D)
        self("s_lshl_b32 s%d, s%d, 9\ns_lshl_b32 s%d, s%d, 6\ns_add_u32 s%d, s%d, s%d\ns_add_u32 s%d, s%d, %d\ns_add_u32 s%d, s%d, %d" % (sA, sIDX, sBt, sWAVE, sA, sA, sBt, sP4, sA, UB, sQPOLL, sA, GB))
        self("v_and_b32 v%d, 7, v%d\nv_lshlrev_b32 v%d, 2, v%d\nv_bfe_u32 v%d, v%d, 3, 1\nv_lshl_add_u32 v%d, v%d, 8, v%d\ns_lshl_b32 s%d, s%d, 5\ns_add_u32 s%d, s%d, %d\nv_add_u32 v%d, s%d, v%d"
             % (aQW, vLANE, aQW, aQW, vI, vLANE, aQW, vI, aQW, sA, sWAVE, sA, sA, GU, aQW, sA, aQW))
        self.poll_scalar([(sQPOLL, 0), (sP4, 0)])
        self.scalars_to_lds(16, aQW)
        self.lab(l)
        if self.opt.get("local", 1):
            l = self.if_cmp("eq", sWAVE, 7)
            self("s_lshl_b32 s%d, s%d, 6\ns_add_u32 s%d, s%d, %d" % (sQPOLL, sHKV, sQPOLL, sQPOLL, XT))
            self.poll_scalar([(sQPOLL, 0)])
            self("s_xor_b32 s%d, s%d, s%d" % (sC, sP0, sLOCAL))
            for i in range(1, 8): self("s_xor_b32 s%d, s%d, s%d\ns_or_b32 s%d, s%d, s%d" % (sBt, sP0 + 2 * i, sLOCAL, sC, sC, sBt))
            self("s_cmp_eq_u32 s%d, 0\ns_cselect_b32 s%d, 1, 0\ns_cmp_eq_u32 s%d, s%d\ns_cselect_b32 s%d, s%d, 0" % (sC, sC, sP0 + 1, sTAG, sC, sC))
            self("v_mov_b32 v%d, %d\nv_mov_b32 v%d, s%d" % (vE, C_LOC, vH, sC))
            self.execm(1)
            self("ds_write_b32 v%d, v%d" % (vE, vH))
            self.execm(-1)
            self.lab(l)
        self.stamp(5)
        self.arrive(C_SP)
        self("s_branch L_JOIN")
    def v_addr(self):
        self("v_lshrrev_b32 v%d, 5, v%d\nv_and_b32 v%d, 31, v%d\nv_lshlrev_b32 v%d, 1, v%d\nv_xor_b32 v%d, v%d, v%d" % (vA, vLANE, vB, vLANE, vC, vA, vB, vB, vC))
        self("v_lshlrev_b32 v%d, 4, v%d\nv_lshl_add_u32 v%d, v%d, 9, v%d" % (vB, vB, vV0, vA, vB))
        self("s_and_b32 s%d, s%d, 3\ns_lshl_b32 s%d, s%d, 6\nv_xor_b32 v%d, s%d, v%d" % (sA, sROT, sA, sA, vV0, sA, vV0))
        self("v_xor_b32 v%d, 64, v%d\nv_xor_b32 v%d, 0x80, v%d\nv_xor_b32 v%d, 0xc0, v%d" % (vV0 + 1, vV0, vV0 + 2, vV0, vV0 + 3, vV0))
        self("s_and_b32 s%d, s%d, 7\ns_lshl_b32 s%d, s%d, 14\ns_lshl_b32 s%d, s%d, 10\ns_xor_b32 s%d, s%d, s%d\ns_xor_b32 s%d, s%d, s%d" % (sP1, sWAVE, sP1, sP1, sA, sROT, sP1, sP1, sA, sP2, sKVOFF, sA))
        self("s_mov_b32 s%d, 0x10000000\ns_mov_b32 s%d, 0x20000" % (srdS + 2, srdS + 3))
    def path_B(self):
        self.lab("L_B")
        self("s_mov_b32 s%d, 0" % sLOCAL)
        self("s_cmp_ge_u32 s%d, %d\ns_cbranch_scc1 L_B_light" % (sROLE, R_D))
        self("s_cmpk_eq_u32 s%d, 15\ns_cbranch_scc1 L_B_nod" % sWAVE)
        self("s_sub_u32 s%d, s%d, 8" % (sDWt, sWAVE))
        self("v_lshrrev_b32 v%d, 3, v%d\nv_and_b32 v%d, 7, v%d\nv_lshlrev_b32 v%d, 4, v%d" % (vE, vLANE, vDo, vLANE, vDo, vDo))
        self("s_cmpk_lt_u32 s2, 64\ns_cbranch_scc0 L_B_gu")
        self("s_and_b32 s%d, s2, 7\ns_lshl_b32 s%d, s%d, 3\ns_lshr_b32 s%d, s2, 3\ns_add_u32 s%d, s%d, s%d" % (sIDX, sIDX, sIDX, sA, sIDX, sIDX, sA))
        self("s_movk_i32 s%d, 0x2000\ns_mov_b32 s%d, 0x%x\ns_lshl_b32 s%d, s%d, 9\ns_add_u32 s%d, s%d, %d" % (sSTRIDE, srdW + 2, 448 * 4096 * 2, sDST, sIDX, sDST, sDST, QB))
        self("s_waitcnt lgkmcnt(0)\ns_mov_b32 s%d, s%d\ns_mov_b32 s%d, s%d\ns_branch L_B_d" % (srdW, sWQ, srdW + 1, sWQ + 1))
        self.lab("L_B_gu")
        self("s_sub_u32 s%d, s2, 128\ns_movk_i32 s%d, 0xe00\ns_mov_b32 s%d, 0x%x" % (sIDX, sSTRIDE, srdW + 2, 448 * 1792 * 2))
        self("s_waitcnt lgkmcnt(0)\ns_mov_b32 s%d, s%d\ns_mov_b32 s%d, s%d\ns_mov_b32 s%d, %d\ns_cmpk_lt_u32 s%d, 28\ns_cbranch_scc1 L_B_g" % (srdW, sGATE, srdW + 1, sGATE + 1, sDST, GB, sIDX))
        self("s_mov_b32 s%d, s%d\ns_mov_b32 s%d, s%d\ns_sub_u32 s%d, s%d, 28\ns_mov_b32 s%d, %d" % (srdW, sUP, srdW + 1, sUP + 1, sIDX, sIDX, sDST, UB))
        self.lab("L_B_g")
        self("s_lshl_b32 s%d, s%d, 9\ns_add_u32 s%d, s%d, s%d" % (sA, sIDX, sDST, sDST, sA))
        self.lab("L_B_d")
        self("s_mov_b32 s%d, 0x20000" % (srdW + 3))
        self("s_lshl_b32 s%d, s%d, 3\nv_mul_u32_u24 v%d, s%d, v%d\nv_add_u32 v%d, v%d, v%d" % (sA, sSTRIDE, vE, sA, vE, vDo, vDo, vE))
        self("s_lshl_b32 s%d, s%d, 6\ns_mul_i32 s%d, s%d, s%d\ns_lshl_b32 s%d, s%d, 7\ns_add_u32 s%d, s%d, s%d" % (sA, sDWt, sA, sA, sSTRIDE, sDOFF, sIDX, sDOFF, sDOFF, sA))
        if self.opt.get("stamps"): self("v_mov_b32 v%d, 0" % vST)
        self.issue_duty()
        self("s_mov_b32 s%d, s%d" % (sDW, sDWt))
        self.srd(srdX, sX, 1792)
        XR = DD; XA = DD + 12
        self("v_lshrrev_b32 v%d, 5, v%d\nv_mul_u32_u24 v%d, 896, v%d\nv_and_b32 v%d, 31, v%d\nv_lshl_add_u32 v%d, v%d, 5, v%d" % (vA, vLANE, vA, vA, vC, vLANE, vB, vC, vA))
        self("v_cmp_le_u32 vcc, 28, v%d\nv_mov_b32 v%d, 0x10000000\nv_cndmask_b32 v%d, v%d, v%d, vcc" % (vC, vC, vB, vB, vC))
        self("buffer_load_dwordx4 v[%d:%d], v%d, s[%d:%d], 0 offen\nbuffer_load_dwordx4 v[%d:%d], v%d, s[%d:%d], 0 offen offset:16" % (XR, XR + 3, vB, srdX, srdX + 3, XR + 4, XR + 7, vB, srdX, srdX + 3))
        self("v_bfe_u32 v%d, v%d, 1, 1\nv_mul_u32_u24 v%d, 896, v%d\nv_lshrrev_b32 v%d, 4, v%d\nv_lshl_add_u32 v%d, v%d, 5, v%d" % (vA, vLANE, vA, vA, vC, vLANE, vA, vC, vA))
        self("v_and_b32 v%d, 1, v%d\nv_lshl_add_u32 v%d, v%d, 4, v%d\ns_lshl_b32 s%d, s%d, 7" % (vC, vLANE, vA, vC, vA, sA, sDW))
        self("buffer_load_dwordx4 v[%d:%d], v%d, s[%d:%d], s%d offen" % (XA, XA + 3, vA, srdX, srdX + 3, sA))
        self("s_barrier\ns_branch L_B2")
        self.path_A()
        self.lab("L_B2")
        self.epoch_load()
        self.v_addr()
        self.late_scalars()
        self.srd(srdWS, sWS, 0x40000000)
        self.stamp(2, 8)
        FX = DD + 16
        self("s_waitcnt vmcnt(0)")
        for i in range(8):
            self("v_lshlrev_b32 v%d, 16, v%d\nv_and_b32 v%d, 0xffff0000, v%d" % (FX + 2 * i, XR + i, FX + 2 * i + 1, XR + i))
        S = 116; T = 117; U2 = 118; W2 = 119
        self("v_add_f32 v%d, v%d, v%d\nv_add_f32 v%d, v%d, v%d\nv_add_f32 v%d, v%d, v%d\nv_add_f32 v%d, v%d, v%d" % (S, FX, FX + 1, T, FX + 2, FX + 3, U2, FX + 4, FX + 5, W2, FX + 6, FX + 7))
        for k, r in enumerate((S, T, U2, W2)): self("v_add_f32 v%d, v%d, v%d" % (r, r, FX + 8 + 2 * k))
        for k, r in enumerate((S, T, U2, W2)): self("v_add_f32 v%d, v%d, v%d" % (r, r, FX + 9 + 2 * k))
        self("v_add_f32 v%d, v%d, v%d\nv_add_f32 v%d, v%d, v%d\nv_add_f32 v%d, v%d, v%d" % (S, S, T, U2, U2, W2, S, S, U2))
        self.row_allreduce([S], "v_add_f32"); self.cross16([S], [T], "v_add_f32")
        self("v_mul_f32 v%d, 0x%x, v%d" % (S, f2u(1.0 / 448), S))
        for i in range(16): self("v_sub_f32 v%d, v%d, v%d" % (FX + i, FX + i, S))
        self("v_mul_f32 v%d, v%d, v%d\nv_mul_f32 v%d, v%d, v%d\nv_mul_f32 v%d, v%d, v%d\nv_mul_f32 v%d, v%d, v%d" % (T, FX, FX, U2, FX + 1, FX + 1, W2, FX + 2, FX + 2, vE, FX + 3, FX + 3))
        for i in range(4, 16): self("v_fmac_f32 v%d, v%d, v%d" % ((T, U2, W2, vE)[i % 4], FX + i, FX + i))
        self("v_add_f32 v%d, v%d, v%d\nv_add_f32 v%d, v%d, v%d\nv_add_f32 v%d, v%d, v%d" % (T, T, U2, W2, W2, vE, T, T, W2))
        self.smask(sM0, 0x0FFFFFFF0FFFFFFF)
        self("v_cndmask_b32 v%d, 0, v%d, s[%d:%d]" % (T, T, sM0, sM0 + 1))
        self.row_allreduce([T], "v_add_f32"); self.cross16([T], [U2], "v_add_f32")
        self("v_mul_f32 v%d, 0x%x, v%d" % (T, f2u(1.0 / 448), T))
        self.bf16r(S, S); self.bf16r(T, T)
        self("v_add_f32 v%d, 0x%x, v%d" % (T, f2u(1e-5), T))
        self.bf16r(T, T)
        self("v_sqrt_f32 v%d, v%d" % (T, T))
        self.bf16r(T, T)
        self("v_mov_b32 v%d, v%d\nv_mov_b32 v%d, v%d" % (U2, S, W2, T))
        self("v_permlane32_swap_b32 v%d, v%d\nv_permlane32_swap_b32 v%d, v%d" % (S, U2, T, W2))
        self.smask(sM0, 0xCCCCCCCCCCCCCCCC)
        self("v_cndmask_b32 v%d, v%d, v%d, s[%d:%d]\nv_cndmask_b32 v%d, v%d, v%d, s[%d:%d]" % (S, S, U2, sM0, sM0 + 1, T, T, W2, sM0, sM0 + 1))
        self("v_rcp_f32 v%d, v%d" % (U2, T))
        E = FX
        for k in range(4): self("v_lshlrev_b32 v%d, 16, v%d\nv_and_b32 v%d, 0xffff0000, v%d" % (E + 2 * k, XA + k, E + 2 * k + 1, XA + k))
        for k in range(8): self("v_sub_f32 v%d, v%d, v%d" % (E + k, E + k, S))
        for k in range(4): self("v_cvt_pk_bf16_f32 v%d, v%d, v%d" % (XA + k, E + 2 * k, E + 2 * k + 1))
        for k in range(4): self("v_lshlrev_b32 v%d, 16, v%d\nv_and_b32 v%d, 0xffff0000, v%d" % (E + 2 * k, XA + k, E + 2 * k + 1, XA + k))
        for k in range(8): self("v_mul_f32 v%d, v%d, v%d" % (E + 8 + k, E + k, U2))
        for k in range(8): self("v_fma_f32 v%d, -v%d, v%d, v%d" % (XR + k, E + 8 + k, T, E + k))
        for k in range(8): self("v_fmac_f32 v%d, v%d, v%d" % (E + 8 + k, XR + k, U2))
        AFq = ACC
        for k in range(4): self("v_cvt_pk_bf16_f32 v%d, v%d, v%d" % (AFq + k, E + 8 + 2 * k, E + 9 + 2 * k))
        self("v_bfe_u32 v%d, v%d, 3, 1\nv_lshlrev_b32 v%d, 8, v%d\nv_and_b32 v%d, 7, v%d\nv_lshl_add_u32 v%d, v%d, 5, v%d\nv_lshrrev_b32 v%d, 4, v%d\nv_lshl_add_u32 v%d, v%d, 3, v%d"
             % (vF, vLANE, vF, vF, vG, vLANE, vF, vG, vF, vG, vLANE, vF, vG, vF))
        self("s_lshl_b32 s%d, s%d, 9\ns_add_u32 s%d, s%d, %d\nv_add_u32 v%d, s%d, v%d" % (sA, sDW, sA, sA, RED, vF, sA, vF))
        self("s_waitcnt vmcnt(0)")
        self.stamp(11, 8)
        self.duty_perm(DD)
        self.duty_mfma(AFq, DD, GR)
        self("v_mov_b32 v%d, v%d" % (GR + 1, GR + 2))
        self("ds_write_b64 v%d, v[%d:%d]" % (vF, GR, GR + 1))
        self.tag_ready()
        self("s_mov_b32 s%d, 1" % sLOCAL)
        self("s_lshl_b32 s%d, s%d, 2\ns_add_u32 s%d, s%d, %d\nv_mov_b32 v%d, s%d\nv_mov_b32 v%d, 1" % (sA, sDW, sA, sA, FLG, vF, sA, vG))
        self.execm(1)
        self("ds_write_b32 v%d, v%d" % (vF, vG))
        self.execm(-1)
        l = self.if_cmp("eq", sWAVE, 8)
        lp = self.nl("L_flg"); dn = self.nl("L_flgd")
        self("v_min_u32 v%d, 6, v%d\nv_lshlrev_b32 v%d, 2, v%d\nv_add_u32 v%d, %d, v%d" % (vF, vLANE, vF, vF, vF, FLG, vF))
        self("s_mov_b32 s%d, %d" % (sLOOP, 1000000))
        self.lab(lp)
        self("ds_read_b32 v%d, v%d\ns_waitcnt lgkmcnt(0)\nv_cmp_ne_u32 vcc, 1, v%d\ns_cbranch_vccz %s" % (vG, vF, vG, dn))
        self("s_sub_u32 s%d, s%d, 1\ns_cmp_lg_u32 s%d, 0\ns_cbranch_scc1 %s" % (sLOOP, sLOOP, sLOOP, lp))
        self.lab(dn)
        self("v_lshlrev_b32 v%d, 3, v%d\nv_add_u32 v%d, %d, v%d" % (vG, vLANE, vF, RED, vG))
        for k in range(7): self("ds_read_b64 v[%d:%d], v%d offset:%d" % (DD + 2 * k, DD + 2 * k + 1, vF, k * 512))
        self("s_waitcnt lgkmcnt(0)")
        for (d, s_) in ((0, 2), (4, 6), (8, 10), (0, 4), (8, 12), (0, 8)):
            self("v_add_f32 v%d, v%d, v%d\nv_add_f32 v%d, v%d, v%d" % (DD + d, DD + d, DD + s_, DD + d + 1, DD + d + 1, DD + s_ + 1))
        self("v_cvt_pk_bf16_f32 v%d, v%d, v%d\nv_mov_b32 v%d, s%d" % (GR, DD, DD + 1, GR + 1, sTAG))
        self("buffer_store_dwordx2 v[%d:%d], v%d, s[%d:%d], s%d offen sc1" % (GR, GR + 1, vG, srdWS, srdWS + 3, sDST))
        self.lab(l)
        self.stamp(8, 8)
        self("s_mov_b32 s%d, s%d\ns_mov_b32 s%d, s%d" % (srdS, sV, srdS + 1, sV + 1))
        self("s_branch L_B_v2")
        self.lab("L_B_nod")
        self.v_addr()
        if self.opt.get("stamps"): self("v_mov_b32 v%d, 0" % vST)
        self("s_waitcnt lgkmcnt(0)\ns_mov_b32 s%d, s%d\ns_mov_b32 s%d, s%d" % (srdS, sV, srdS + 1, sV + 1))
        self("s_barrier")
        self.epoch_load()
        self("s_branch L_B_v2")
        self.lab("L_B_light")
        if self.opt.get("bbar0", 1): self("s_barrier")
        self.v_addr()
        if self.opt.get("stamps"): self("v_mov_b32 v%d, 0" % vST)
        self("s_waitcnt lgkmcnt(0)\ns_mov_b32 s%d, s%d\ns_mov_b32 s%d, s%d" % (srdS, sV, srdS + 1, sV + 1))
        self.lab("L_B_v2")
        self.prio(1)
        thr = self.opt.get("thr", 2)
        def vload(i):
            self("s_xor_b32 m0, s%d, %d\ns_xor_b32 s%d, s%d, %d" % (sP1, i * 1024, sA, sP2, i * 1024))
            self("buffer_load_dwordx4 v%d, s[%d:%d], s%d offen nt lds" % (vV0 + (i % 4), srdS, srdS + 3, sA))
        for i in range(16):
            if thr and i >= max(thr, 4):
                l = self.nl("L_thr")
                self("s_cmpk_lt_u32 s%d, %d\ns_cbranch_scc1 %s\ns_waitcnt vmcnt(%d)" % (sROLE, R_R, l, thr - 1))
                self.lab(l)
            thr2 = self.opt.get("thr2", 0)
            if thr2 and i >= max(thr2, 4):
                l = self.nl("L_thr"); l2 = self.nl("L_thr")
                self("s_sub_u32 s%d, s2, 64\ns_cmpk_lt_u32 s%d, 64\ns_cbranch_scc1 %s\ns_sub_u32 s%d, s2, 184\ns_cmpk_lt_u32 s%d, 28\ns_cbranch_scc0 %s" % (sA, sA, l2, sA, sA, l))
                self.lab(l2)
                self("s_waitcnt vmcnt(%d)" % (thr2 - 1))
                self.lab(l)
            vload(i)
            if i == 1:
                l = self.if_cmp("ge", sROLE, R_D)
                if not self.opt.get("bbar0", 1): self("s_barrier")
                self.epoch_load()
                self.lab(l)
                self.late_scalars()
                self.role_decode()
            if i == self.opt.get("bprep", 3):
                self.late_scalars()
                self.code_prefetch(RAW)
        self.stamp(2, 15); self.stamp(2, 8) if False else None; self.stamp(12, 8);
        self.srd(srdWS, sWS, 0x40000000)
        self.role_decode()
        l = self.nl("L_tg")
        self("s_cmp_eq_u32 s%d, 1\ns_cbranch_scc1 %s" % (sLOCAL, l))
        self.tag_ready()
        self.lab(l)
        if not self.opt.get("dlate", 0):
            self.role_prep()
            l = self.nl("L_nld")
            if self.opt.get("dlateD", 0): self("s_cmp_lg_u32 s%d, %d\ns_cbranch_scc1 %s" % (sROLE, R_WO, l))
            else: self("s_sub_u32 s%d, s%d, %d\ns_cmp_ge_u32 s%d, 2\ns_cbranch_scc1 %s" % (sA, sROLE, R_D, sA, l))
            self("s_cmp_eq_u32 s%d, 15\ns_cbranch_scc1 %s" % (sWAVE, l))
            self.prio(0)
            self.issue_duty()
            self("s_mov_b32 s%d, 8" % sVW)
            self.lab(l)
            self.common_prep()
        else:
            self.common_prep()
            self.role_prep()
    def vwait(self):
        if self.opt.get("dlate", 0):
            self("s_waitcnt vmcnt(0)"); return
        l1 = self.nl("L_vw"); l2 = self.nl("L_vw")
        self("s_cmp_eq_u32 s%d, 8\ns_cbranch_scc1 %s\ns_waitcnt vmcnt(0)\ns_branch %s" % (sVW, l1, l2))
        self.lab(l1)
        self("s_waitcnt vmcnt(8)")
        self.lab(l2)
    def join_pv(self):
        self.lab("L_JOIN")
        self.swait(C_SP, 8)
        for T in range(8):
            self("ds_read_b128 v[%d:%d], v%d offset:%d" % (KR + 4 * T, KR + 4 * T + 3, aPA, T * 64))
        self("ds_read_b32 v%d, v%d\nds_read_b32 v%d, v%d offset:%d" % (GR, aML, GR + 2, aML, LS - MX))
        self("v_mov_b32 v%d, %d\nds_read_b32 v%d, v%d" % (vE, C_LOC, vH, vE))
        self("v_mov_b32 v%d, s%d" % (GR + 3, sTAG))
        self("s_waitcnt lgkmcnt(0)")
        self("v_readfirstlane_b32 s%d, v%d" % (sLOCAL, vH))
        for st in (4, 2, 1):
            self("v_max_f32_dpp v%d, v%d, v%d row_ror:%d %s\nv_add_f32_dpp v%d, v%d, v%d row_ror:%d %s" % (GR, GR, GR, st, DPPALL, GR + 2, GR + 2, GR + 2, st, DPPALL))
        self.smask(sM0, 0xCCCCCCCCCCCCCCCC)
        self("v_cndmask_b32 v%d, v%d, v%d, s[%d:%d]" % (GR + 2, GR, GR + 2, sM0, sM0 + 1))
        self.stamp(13)
        VB = DD
        def pv_stage(T0, T1):
            n = T1 - T0
            for T in range(T0, T1):
                base = aT1 if T < 4 else aT2
                o = (T % 4) * 16384
                self("ds_read_b64_tr_b16 v[%d:%d], v%d offset:%d" % (VB + 4 * T, VB + 4 * T + 1, base, o))
                self("ds_read_b64_tr_b16 v[%d:%d], v%d offset:%d" % (VB + 4 * T + 2, VB + 4 * T + 3, base, o + 8192))
            for T in range(T0, T1):
                self("s_waitcnt lgkmcnt(%d)" % (2 * (T1 - 1 - T)))
                self("v_mfma_f32_16x16x32_bf16 v[%d:%d], v[%d:%d], v[%d:%d], %s" % (ACC, ACC + 3, KR + 4 * T, KR + 4 * T + 3, VB + 4 * T, VB + 4 * T + 3, "0" if T == 0 else "v[%d:%d]" % (ACC, ACC + 3)))
        if self.opt.get("pv2", 1):
            l = self.nl("L_cv")
            self("s_sub_u32 s%d, s%d, 8\ns_cmp_ge_u32 s%d, 4\ns_cbranch_scc1 %s" % (sA, sWAVE, sA, l))
            self.vwait()
            self.arrive(C_V1)
            self.lab(l)
            self.swait(C_V1, 4)
            pv_stage(0, 4)
            self.vwait()
            self("s_barrier")
            self.stamp(6)
            pv_stage(4, 8)
        else:
            self.vwait()
            self("s_barrier")
            self.stamp(6)
            pv_stage(0, 8)
        self("v_permlane16_swap_b32 v%d, v%d" % (ACC, ACC + 1))
        self("v_mov_b32 v%d, v%d" % (GR, ACC))
        self("v_mov_b32_dpp v%d, v%d quad_perm:[1,0,3,2] %s" % (GR + 1, ACC, DPPALL))
        self.execm(0x55555555)
        if self.opt.get("local", 1):
            l1 = self.nl("L_loc"); l2 = self.nl("L_loc")
            self("s_cmp_eq_u32 s%d, 1\ns_cbranch_scc1 %s" % (sLOCAL, l1))
            self("buffer_store_dwordx4 v[%d:%d], v%d, s[%d:%d], s%d offen sc1" % (GR, GR + 3, aOP, srdWS, srdWS + 3, sOPUB))
            self("s_branch %s" % l2)
            self.lab(l1)
            self("buffer_store_dwordx4 v[%d:%d], v%d, s[%d:%d], s%d offen %s" % (GR, GR + 3, aOP, srdWS, srdWS + 3, sOPUB, {0: "", 1: "nt", 2: "sc0"}[self.opt.get("lpol", 0)]))
            self.lab(l2)
        else:
            self("buffer_store_dwordx4 v[%d:%d], v%d, s[%d:%d], s%d offen sc1" % (GR, GR + 3, aOP, srdWS, srdWS + 3, sOPUB))
        self.execm(-1)
        self.stamp(7); self.stamp(7, 15)
        if self.opt.get("stamps"): self("v_writelane_b32 v%d, s%d, 20" % (vST, sLOCAL))
        self("s_cmp_eq_u32 s%d, %d\ns_cbranch_scc1 L_T_WO" % (sROLE, R_WO))
        self("s_cmp_eq_u32 s%d, %d\ns_cbranch_scc1 L_T_R" % (sROLE, R_R))
        self("s_cmp_eq_u32 s%d, %d\ns_cbranch_scc1 L_T_D" % (sROLE, R_D))
        self("s_branch L_FIN")
    def tail_D(self):
        self.lab("L_T_D")
        l = self.if_duty_wave()
        if self.opt.get("dlate", 0) or self.opt.get("dlateD", 0): self.issue_duty()
        Gr = DD; Ur = DD + 4; H = DD + 8
        self("ds_read_b128 v[%d:%d], v%d\nds_read_b128 v[%d:%d], v%d offset:256" % (Gr, Gr + 3, vA, Ur, Ur + 3, vA))
        self("s_waitcnt lgkmcnt(0)")
        for k in range(4):
            self("v_lshlrev_b32 v%d, 16, v%d\nv_and_b32 v%d, 0xffff0000, v%d\nv_lshlrev_b32 v%d, 16, v%d\nv_and_b32 v%d, 0xffff0000, v%d" % (H + 2 * k, Gr + k, H + 2 * k + 1, Gr + k, H + 8 + 2 * k, Ur + k, H + 9 + 2 * k, Ur + k))
        for k in range(8): self("v_mul_f32 v%d, v%d, v%d" % (H + k, H + k, H + 8 + k))
        for k in range(4): self("v_cvt_pk_bf16_f32 v%d, v%d, v%d" % (ACC + k, H + 2 * k, H + 2 * k + 1))
        self("v_mov_b32 v%d, s%d\nv_mov_b32 v%d, s%d" % (GR + 1, sTAG, GR + 3, sTAG))
        self("s_waitcnt vmcnt(0)")
        self.duty_perm(KR)
        self.duty_mfma(ACC, KR, GR)
        self("buffer_store_dwordx4 v[%d:%d], v%d, s[%d:%d], s%d offen sc1" % (GR, GR + 3, vB, srdWS, srdWS + 3, sP2))
        self.lab(l)
        self.stamp(8)
        self("s_branch L_FIN")
    def tail_WO(self):
        self.lab("L_T_WO")
        hO, hW, hAF, hP = vA, vC, vF, vG
        OD = DD; OE = DD + 4
        ldO = ["buffer_load_dwordx4 v[%d:%d], v%d, s[%d:%d], s%d offen sc1" % (OD, OD + 3, hO, srdWS, srdWS + 3, sP1),
               "buffer_load_dwordx4 v[%d:%d], v%d, s[%d:%d], s%d offen offset:256 sc1" % (OE, OE + 3, hO, srdWS, srdWS + 3, sP1)]
        self("s_cmp_ge_u32 s%d, 8\ns_cbranch_scc1 L_T_WO_B" % sWAVE)
        self(ldO[0]); self(ldO[1])
        ad = (self.opt.get("adn", 8), self.opt.get("ads", 10)) if self.opt.get("ads", 10) else None
        self.masked_poll(ldO, [OD + 3, OE + 3], 0, self.opt.get("wsleep", 1), ad)
        self.stamp(9)
        if self.opt.get("stamps"): self("v_writelane_b32 v%d, s%d, 21" % (vST, sLOOP))
        Mm = DD + 8; Ll = DD + 9; Mx = DD + 10; Wt = DD + 11
        self("v_mov_b32 v%d, v%d\nv_mov_b32 v%d, v%d" % (Mm, OD + 2, Ll, OD + 2))
        self("v_permlane16_swap_b32 v%d, v%d" % (Mm, Ll))
        self("v_max_f32_dpp v%d, v%d, v%d row_ror:8 %s" % (Mx, Mm, Mm, DPPALL))
        self.row_allreduce([Mx], "v_max_f32", (4, 2, 1))
        self("v_sub_f32 v%d, v%d, v%d\nv_mul_f32 v%d, 0x%x, v%d\nv_exp_f32 v%d, v%d" % (Wt, Mm, Mx, Wt, C_EXP, Wt, Wt, Wt))
        self("v_mul_f32 v%d, v%d, v%d\nv_mul_f32 v%d, v%d, v%d\nv_mul_f32 v%d, v%d, v%d\nv_mul_f32 v%d, v%d, v%d\nv_mul_f32 v%d, v%d, v%d" % (Ll, Ll, Wt, OD, OD, Wt, OD + 1, OD + 1, Wt, OE, OE, Wt, OE + 1, OE + 1, Wt))
        self.row_allreduce([Ll, OD, OD + 1, OE, OE + 1], "v_add_f32")
        self("v_rcp_f32 v%d, v%d" % (Ll, Ll))
        self("v_mul_f32 v%d, v%d, v%d\nv_mul_f32 v%d, v%d, v%d\nv_mul_f32 v%d, v%d, v%d\nv_mul_f32 v%d, v%d, v%d" % (OD, OD, Ll, OD + 1, OD + 1, Ll, OE, OE, Ll, OE + 1, OE + 1, Ll))
        self("v_cvt_pk_bf16_f32 v%d, v%d, v%d\nv_cvt_pk_bf16_f32 v%d, v%d, v%d" % (OD, OD, OD + 1, OE, OE, OE + 1))
        self.execm(0x0001000100010001)
        self("ds_write_b32 v%d, v%d\nds_write_b32 v%d, v%d offset:64" % (hW, OD, hW, OE))
        self.execm(-1)
        self("s_waitcnt lgkmcnt(0)\ns_barrier")
        self.stamp(12)
        self("s_branch L_FIN")
        self.lab("L_T_WO_B")
        l = self.if_duty_wave()
        if self.opt.get("dlate", 0): self.issue_duty()
        self("v_mov_b32 v%d, s%d\nv_mov_b32 v%d, s%d" % (GR + 1, sTAG, GR + 3, sTAG))
        self("s_waitcnt vmcnt(0)")
        self.stamp(11, 8)
        self.duty_perm(KR)
        self.lab(l)
        self("s_barrier")
        l = self.if_duty_wave()
        self("ds_read_b128 v[%d:%d], v%d\ns_waitcnt lgkmcnt(0)" % (ACC, ACC + 3, hAF))
        self.duty_mfma(ACC, KR, GR)
        self("buffer_store_dwordx4 v[%d:%d], v%d, s[%d:%d], s%d offen sc1" % (GR, GR + 3, hP, srdWS, srdWS + 3, sP3))
        self.stamp(10, 8)
        self.lab(l)
        self("s_branch L_FIN")
    def tail_R(self):
        self.lab("L_T_R")
        VO, aRSW, aRSR = vA, vB, vC
        XV = vF; GS = vG
        self("s_cmp_ge_u32 s%d, 8\ns_cbranch_scc1 L_T_R_B" % sWAVE)
        self("buffer_load_ushort v%d, v%d, s[%d:%d], 0 offen" % (XV, VO, srdX, srdX + 3))
        ldF = "buffer_load_dwordx4 v[%d:%d], v%d, s[%d:%d], s%d offen sc1" % (DD, DD + 3, vL16, srdWS, srdWS + 3, sP1)
        S0 = DD + 8; S1 = DD + 12
        ldS = ["buffer_load_dwordx4 v[%d:%d], v%d, s[%d:%d], s%d offen sc1" % (S0, S0 + 3, vL16, srdWS, srdWS + 3, sP2),
               "buffer_load_dwordx4 v[%d:%d], v%d, s[%d:%d], s%d offen offset:1024 sc1" % (S1, S1 + 3, vL16, srdWS, srdWS + 3, sP2)]
        l = self.if_cmp("lt", sWAVE, 7)
        self(ldF)
        self.masked_poll(ldF, [DD + 1, DD + 3], 0)
        self.cross16([DD, DD + 2], [DD + 4, DD + 5], "v_add_f32"); self.cross32([DD, DD + 2], [DD + 4, DD + 5], "v_add_f32")
        self("v_mov_b32 v%d, v%d" % (DD + 1, DD + 2))
        self.execm(0xFFFF)
        self("ds_write_b64 v%d, v[%d:%d] offset:2048" % (aRSW, DD, DD + 1))
        self.execm(-1)
        self.lab(l)
        self("s_waitcnt lgkmcnt(0)\ns_barrier")
        self(ldS[0]); self(ldS[1])
        l = self.if_cmp("eq", sWAVE, 0)
        self("v_and_b32 v%d, 31, v%d\nv_lshlrev_b32 v%d, 2, v%d\nv_add_u32 v%d, %d, v%d" % (vE, vLANE, vE, vE, vE, RSF, vE))
        F = DD + 16
        for w in range(7): self("ds_read_b32 v%d, v%d offset:%d" % (F + w, vE, w * 128))
        self("s_waitcnt lgkmcnt(0)")
        self("v_add_f32 v%d, v%d, v%d\nv_add_f32 v%d, v%d, v%d\nv_add_f32 v%d, v%d, v%d\nv_add_f32 v%d, v%d, v%d\nv_add_f32 v%d, v%d, v%d\nv_add_f32 v%d, v%d, v%d"
             % (F, F, F + 1, F + 2, F + 2, F + 3, F + 4, F + 4, F + 5, F, F, F + 2, F + 4, F + 4, F + 6, F, F, F + 4))
        self.bf16r(F, F)
        self("v_mul_f32 v%d, 0x%x, v%d\nv_exp_f32 v%d, v%d\nv_add_f32 v%d, 1.0, v%d\nv_rcp_f32 v%d, v%d\nv_mul_f32 v%d, v%d, v%d" % (F + 1, f2u(-LOG2E), F, F + 1, F + 1, F + 1, F + 1, F + 1, F + 1, F, F, F + 1))
        self.bf16r(GS, F)
        self.lab(l)
        self.stamp(9)
        if self.opt.get("rpipe", 1):
            sets = [DD + 8, DD + 16, DD + 24]
            def ld(X):
                self("buffer_load_dwordx4 v[%d:%d], v%d, s[%d:%d], s%d offen sc1" % (X, X + 3, vL16, srdWS, srdWS + 3, sP2))
                self("buffer_load_dwordx4 v[%d:%d], v%d, s[%d:%d], s%d offen offset:1024 sc1" % (X + 4, X + 7, vL16, srdWS, srdWS + 3, sP2))
            lp = self.nl("L_rp"); dn = self.nl("L_rpd")
            T0 = DD + 6
            slp = self.opt.get("rsleep", 6)
            self("s_mov_b32 s%d, %d" % (sLOOP, self.opt.get("maxpoll", 20000)))
            self("s_sleep %d" % slp); ld(sets[1])
            self("s_sleep %d" % slp); ld(sets[2])
            self.lab(lp)
            oks = []
            for k, X in enumerate(sets):
                ok = self.nl("L_rok"); oks.append(ok)
                self("s_waitcnt vmcnt(4)")
                self("v_cmp_ne_u32 vcc, s%d, v%d\nv_cmp_ne_u32 s[%d:%d], s%d, v%d\nv_cmp_ne_u32 s[%d:%d], s%d, v%d\nv_cmp_ne_u32 s[%d:%d], s%d, v%d"
                     % (sTAG, X + 1, sM0, sM0 + 1, sTAG, X + 3, sP0, sP0 + 1, sTAG, X + 5, sP0 + 2, sP0 + 3, sTAG, X + 7))
                self("s_or_b64 vcc, vcc, s[%d:%d]\ns_or_b64 s[%d:%d], s[%d:%d], s[%d:%d]\ns_or_b64 vcc, vcc, s[%d:%d]" % (sM0, sM0 + 1, sP0, sP0 + 1, sP0, sP0 + 1, sP0 + 2, sP0 + 3, sP0, sP0 + 1))
                self("s_cbranch_scc0 %s" % ok)
                ld(X)
            self("s_sub_u32 s%d, s%d, 1\ns_cmp_lg_u32 s%d, 0\ns_cbranch_scc1 %s" % (sLOOP, sLOOP, sLOOP, lp))
            for k, X in enumerate(sets):
                if k: self("s_branch %s" % dn) if False else None
            for k, X in enumerate(sets):
                self.lab(oks[k])
                self("v_add_f32 v%d, v%d, v%d\nv_add_f32 v%d, v%d, v%d" % (T0, X, X + 4, T0 + 1, X + 2, X + 6))
                if k < 2: self("s_branch %s" % dn)
            self.lab(dn)
            self.stamp(10); self.stamp(10, 7); self.stamp(10, 4)
            if self.opt.get("stamps"): self("v_writelane_b32 v%d, s%d, 21" % (vST, sLOOP))
            S0 = T0
            if self.opt.get("radd", 0):
                self("ds_add_f32 v%d, v%d\nds_add_f32 v%d, v%d offset:4" % (vDo, T0, vDo, T0 + 1))
            else:
                self.cross16([T0, T0 + 1], [DD + 4, DD + 5], "v_add_f32"); self.cross32([T0, T0 + 1], [DD + 4, DD + 5], "v_add_f32")
                self.execm(0xFFFF)
                self("ds_write_b64 v%d, v[%d:%d]" % (aRSW, T0, T0 + 1))
                self.execm(-1)
        else:
            lp = self.nl("L_rp"); dn = self.nl("L_rpd"); ck = self.nl("L_rpc")
            self("s_mov_b32 s%d, %d" % (sLOOP, self.opt.get("maxpoll", 20000)))
            self("s_waitcnt vmcnt(0)\ns_branch %s" % ck)
            self.lab(lp)
            if self.opt.get("vsleep", 1): self("s_sleep %d" % self.opt.get("vsleep", 1))
            self(ldS[0]); self(ldS[1])
            self("s_waitcnt vmcnt(0)")
            self.lab(ck)
            self("v_cmp_ne_u32 vcc, s%d, v%d\nv_cmp_ne_u32 s[%d:%d], s%d, v%d\nv_cmp_ne_u32 s[%d:%d], s%d, v%d\nv_cmp_ne_u32 s[%d:%d], s%d, v%d"
                 % (sTAG, S0 + 1, sM0, sM0 + 1, sTAG, S0 + 3, sP0, sP0 + 1, sTAG, S1 + 1, sP0 + 2, sP0 + 3, sTAG, S1 + 3))
            self("s_or_b64 vcc, vcc, s[%d:%d]\ns_or_b64 s[%d:%d], s[%d:%d], s[%d:%d]\ns_or_b64 vcc, vcc, s[%d:%d]" % (sM0, sM0 + 1, sP0, sP0 + 1, sP0, sP0 + 1, sP0 + 2, sP0 + 3, sP0, sP0 + 1))
            self("s_cbranch_scc0 %s" % dn)
            self("s_mov_b64 exec, vcc")
            self("s_sub_u32 s%d, s%d, 1\ns_cmp_lg_u32 s%d, 0\ns_cbranch_scc1 %s" % (sLOOP, sLOOP, sLOOP, lp))
            self.lab(dn)
            self("s_mov_b64 exec, -1")
            self.stamp(10); self.stamp(10, 7); self.stamp(10, 4)
            if self.opt.get("stamps"): self("v_writelane_b32 v%d, s%d, 21" % (vST, sLOOP))
            self("v_add_f32 v%d, v%d, v%d\nv_add_f32 v%d, v%d, v%d" % (S0, S0, S1, S0 + 2, S0 + 2, S1 + 2))
            self.cross16([S0, S0 + 2], [DD + 4, DD + 5], "v_add_f32"); self.cross32([S0, S0 + 2], [DD + 4, DD + 5], "v_add_f32")
            self("v_mov_b32 v%d, v%d" % (S0 + 1, S0 + 2))
            self.execm(0xFFFF)
            self("ds_write_b64 v%d, v[%d:%d]" % (aRSW, S0, S0 + 1))
            self.execm(-1)
        self("s_waitcnt lgkmcnt(0)\ns_barrier")
        self.stamp(12)
        l = self.if_cmp("eq", sWAVE, 0)
        if self.opt.get("radd", 0) and self.opt.get("rpipe", 1):
            self("ds_read_b32 v%d, v%d" % (DD, aRSR))
            self("v_lshlrev_b32 v%d, 16, v%d" % (XV, XV))
            self("s_waitcnt lgkmcnt(0)")
        else:
            for w in range(4): self("ds_read_b32 v%d, v%d offset:%d" % (DD + w, aRSR, w * 128))
            self("v_lshlrev_b32 v%d, 16, v%d" % (XV, XV))
            self("s_waitcnt lgkmcnt(0)")
            for st in (2, 1):
                for k in range(st): self("v_add_f32 v%d, v%d, v%d" % (DD + k, DD + k, DD + k + st))
            self.cross32([DD], [DD + 1], "v_add_f32")
        self.bf16r(DD, DD)
        self("v_mul_f32 v%d, v%d, v%d" % (DD, DD, GS))
        self.bf16r(DD, DD)
        self("v_add_f32 v%d, v%d, v%d\nv_cvt_pk_bf16_f32 v%d, v%d, v%d" % (DD, XV, DD, DD, DD, DD))
        self.execm(0xFFFFFFFF)
        self("buffer_store_short v%d, v%d, s[%d:%d], 0 offen" % (DD, VO, srdOUT, srdOUT + 3))
        self.execm(-1)
        l2 = self.if_cmp("eq", sIDX, 0)
        self("v_mov_b32 v%d, s%d\nv_mov_b32 v%d, 0" % (vE, sTAG, vH))
        self.execm(1)
        self("buffer_store_dword v%d, v%d, s[%d:%d], 0 offen sc1" % (vE, vH, srdWS, srdWS + 3))
        self.execm(-1)
        self.lab(l2)
        self.lab(l)
        self("s_branch L_FIN")
        self.lab("L_T_R_B")
        self("s_barrier\ns_barrier")
    def fin(self):
        self.lab("L_FIN")
        if self.opt.get("stamps"):
            for w, row in ((0, 0), (8, 1), (15, 2), (7, 3), (4, 4)):
                l = self.if_cmp("eq", sWAVE, w)
                self.stamp(15, w)
                if w == 0:
                    self("s_memrealtime s[%d:%d]\ns_waitcnt lgkmcnt(0)\nv_writelane_b32 v%d, s%d, 16" % (sM0, sM0 + 1, vST, sM0))
                self("s_lshl_b32 s%d, s2, 8\ns_add_u32 s%d, s%d, %d" % (sA, sA, sA, STAMPA + row * 65536))
                self("v_lshlrev_b32 v%d, 2, v%d" % (vF, vLANE))
                self("buffer_store_dword v%d, v%d, s[%d:%d], s%d offen" % (vST, vF, srdWS, srdWS + 3, sA))
                self.lab(l)
        self.lab("L_exit")
        self("s_endpgm")

def gen(**opt):
    g = G(opt)
    g.prologue()
    g.path_B()
    g.join_pv()
    g.tail_D(); g.tail_WO(); g.tail_R(); g.fin()
    lines = hazard.resolve(g.a.lines)
    return wrap("\n".join(lines) + "\n", (256, 1, 1), (1024, 1, 1), LDS_BYTES, vgpr=128)
if __name__ == "__main__":
    import argparse
    p = argparse.ArgumentParser()
    p.add_argument("-o", default="recurrent_scan__sliding_block_cached__glu_gated_bilinear__decode.s")
    p.add_argument("--stamps", type=int, default=0)
    p.add_argument("--opt", default="")
    x = p.parse_args()
    opt = dict(stamps=x.stamps)
    for kv in x.opt.split(","):
        if kv: k, v = kv.split("="); opt[k] = int(v)
    open(x.o, "w").write(gen(**opt))
    print("written", x.o)

def rolemap(x, d, nA=22, nB=16):
    import numpy as np
    nC = (120 - 4 * nA - 2 * nB) // 2
    k = np.where(d < 8, d, d - 8); wo = (d >= 8) & (d < 16)
    nx = np.array([nA] * 4 + [nC] * 2 + [nB] * 2)[x]
    hoff = np.array([0, nA, 2 * nA, 3 * nA, 4 * nA + 2 * nB, 4 * nA + 2 * nB + nC, 4 * nA, 4 * nA + nB])[x]
    mC, mB, mA = 24 - nC, 24 - nB, 24 - nA
    loff = np.array([2 * mC + 2 * mB + i * mA for i in range(4)] + [0, mC, 2 * mC, 2 * mC + mB])[x]
    heavy = ~wo & (k < nx); light = ~wo & ~heavy
    h = hoff + k; l = loff + k - nx
    return {"Q": heavy & (h < 64), "WO": wo, "GU": heavy & (h >= 64), "D": light & (l < 28), "R": light & (l >= 28) & (l < 56), "N": light & (l >= 56)}
```
